```python
import torch

def _softmax(x, axis=-1):
    return torch.softmax(x, dim=axis)
def _gelu(x):
    return torch.nn.functional.gelu(x, approximate="tanh")
def _silu(x):
    return torch.nn.functional.silu(x)
def _sigmoid(x):
    return torch.sigmoid(x)
def _layernorm(x, axis=-1, eps=1e-5):
    m = x.mean(dim=axis, keepdim=True)
    v = x.var(dim=axis, keepdim=True, unbiased=False)
    return (x - m) / torch.sqrt(v + eps)
def _scatter_add(tgt, idx, src, axis=0):
    return tgt.clone().index_add_(axis, idx, src)
def _segment_sum(src, seg, n):
    out = torch.zeros((n,) + src.shape[1:], dtype=src.dtype)
    return out.index_add_(0, seg, src)
def _pad(x, pw):
    flat = tuple(v for pair in reversed(pw) for v in pair)
    return torch.nn.functional.pad(x, flat)

kernel_name = 'concat_heads__sliding_block__sliding_block__prompt'

def setup_inputs():

    _w = (lambda a: (lambda t: t.to(torch.bfloat16) if t.is_floating_point() else t)(torch.as_tensor(a)))
    def _A_setup():
        B, S, D = 1, 2048, 512
        return {
            "x": _w((lambda *s: torch.randn(*s, dtype=torch.bfloat16) * 0.2)(B, S, D)),
            "wqkv": _w((lambda *s: torch.randn(*s, dtype=torch.bfloat16) * 0.4)(D, 3 * D)),
            "wo": _w((lambda *s: torch.randn(*s, dtype=torch.bfloat16) * 0.4)(D, D)),
        }
    _A_in = _A_setup()

    def _B_setup():
        B, S, D = 1, 2048, 512
        return {
            "x": _w((lambda *s: torch.randn(*s, dtype=torch.bfloat16) * 0.2)(B, S, D)),
            "wqkv": _w((lambda *s: torch.randn(*s, dtype=torch.bfloat16) * 0.4)(D, 3 * D)),
            "wo": _w((lambda *s: torch.randn(*s, dtype=torch.bfloat16) * 0.4)(D, D)),
        }
    _B_in = _B_setup()

    return {
        "A_x": _A_in["x"],
        "A_wqkv": _A_in["wqkv"],
        "A_wo": _A_in["wo"],
        "B_x": _B_in["x"],
        "B_wqkv": _B_in["wqkv"],
        "B_wo": _B_in["wo"],
    }

def reference(A_x, A_wqkv, A_wo, B_x, B_wqkv, B_wo):
    def _A_ref(x, wqkv, wo):
        B, S, D = x.shape
        H = 32; Dh = D // H; W = 256
        qkv = (lambda x, *d: x.permute(*d))((x @ wqkv).reshape(B, S, 3, H, Dh), 2, 0, 3, 1, 4)
        q, k, v = qkv[0], qkv[1], qkv[2]
        scores = torch.einsum("bhqd,bhkd->bhqk", q, k) * (Dh ** -0.5)
        idx = torch.arange(S)
        mask = (idx[:, None] - idx[None, :] >= 0) & (idx[:, None] - idx[None, :] < W)
        scores = torch.where(mask[None, None], scores, -1e9)
        p = _softmax(scores, axis=-1)
        o = torch.einsum("bhqk,bhkd->bhqd", p, v)
        return (lambda x, *d: x.permute(*d))(o, 0, 2, 1, 3).reshape(B, S, D) @ wo

    def _B_ref(x, wqkv, wo):
        B, S, D = x.shape
        H = 32; Dh = D // H; W = 256
        qkv = (lambda x, *d: x.permute(*d))((x @ wqkv).reshape(B, S, 3, H, Dh), 2, 0, 3, 1, 4)
        q, k, v = qkv[0], qkv[1], qkv[2]
        scores = torch.einsum("bhqd,bhkd->bhqk", q, k) * (Dh ** -0.5)
        idx = torch.arange(S)
        mask = (idx[:, None] - idx[None, :] >= 0) & (idx[:, None] - idx[None, :] < W)
        scores = torch.where(mask[None, None], scores, -1e9)
        p = _softmax(scores, axis=-1)
        o = torch.einsum("bhqk,bhkd->bhqd", p, v)
        return (lambda x, *d: x.permute(*d))(o, 0, 2, 1, 3).reshape(B, S, D) @ wo

    a = _A_ref(A_x, A_wqkv, A_wo)
    b = _B_ref(B_x, B_wqkv, B_wo)
    return torch.concatenate([a, b], axis=-1)
```

```python
import sys
DIAG = "--diag" in sys.argv
NAME = "concat_heads__sliding_block__sliding_block__prompt"
L = []
def e(s=""): L.append("    " + s)
def lab(s): L.append(s + ":")
def cm(s): L.append("    ; " + s)
def vr(a, n=1): return f"v{a}" if n == 1 else f"v[{a}:{a+n-1}]"
def sr(a, n=1): return f"s{a}" if n == 1 else f"s[{a}:{a+n-1}]"

WS_EPOCH = 0x0
WS_KVFLAG = 0x1000
WS_OFLAG = 0x10000
WS_KV = 0x100000
WS_O = 0x1000000
WS_DIAG = 0x1800000
WS_SIZE = 0x2000000
SX, SW, SWO, SOUT, SWS = 4, 8, 12, 16, 20
sB, sI, sG, sWv, sTB, sHP = 24, 25, 26, 27, 28, 29
sTOK, sTOKP = 30, 32
sXO, sWKO, sWVO, sWQO, sWOO = 34, 35, 54, 55, 56
sM2K, sM1K = 57, 58
sLAST, sFB, sCNT, sT0, sT1, sT2, sT3 = 59, 60, 61, 62, 63, 64, 65
sEP = 68
sVMASK = 72
sKVO, sOST, sOLD, sFO = 74, 75, 76, 77
sDONE = 78
sOWNF = 79
sTM = 66
sTS = 80
vX0, vX1, vW, vWO = 1, 2, 3, 4
vXA = 5
vWA = 9
vL16 = 10
vT0, vT1, vT2, vT3, vT4 = 11, 12, 13, 14, 15
ACCK, ACCV, ACCQ = 16, 32, 48
WB = 64
CD, CF = 88, 104
KD = 120
XF = 128
QF = 64
CP = 128; S = [144, 160]; P = [176, 184]; KF = [192, 196]; VF = [200, 208]; OA = 216
OUTA = [16, 32]
OIN = [48, 52, 56, 60, 72, 76, 80, 84]
WOF = [232, 240]
vKA, vVA, vVA2, vWOA0, vWOA1, vFLG = 248, 249, 250, 251, 252, 253
vVW = 254
STG = 16

SLOT = [0, 32768, 65536, 98304, 131072]
tsn = [0]
def ts():
    if DIAG:
        n = tsn[0]; tsn[0] += 1
        e(f"s_memtime {sr(sTM,2)}"); e("s_waitcnt lgkmcnt(0)"); e(f"s_mov_b32 s{sTS+n}, s{sTM}")

def dma(srd, voff, soff, ldsbase_s, ldsimm):
    e(f"s_add_u32 m0, s{ldsbase_s}, {ldsimm}")
    e("s_nop 0")
    e(f"buffer_load_dwordx4 v{voff}, {sr(srd,4)}, s{soff} offen lds")

def dma_chunk(slot):
    dma(SX, vX0, sXO, sM2K, slot)
    dma(SX, vX1, sXO, sM2K, slot + 1024)
    dma(SW, vW, sWKO, sM1K, slot + 16384)
    dma(SW, vW, sWVO, sM1K, slot + 24576)
    e(f"s_add_u32 s{sXO}, s{sXO}, 128")
    e(f"s_add_u32 s{sWKO}, s{sWKO}, {64*3072}")
    e(f"s_add_u32 s{sWVO}, s{sWVO}, {64*3072}")
def dma_wq(half):
    for q in range(4):
        dma(SW, vW, sWQO, sM1K, SLOT[3] + (half*4+q)*8192)
        e(f"s_add_u32 s{sWQO}, s{sWQO}, {64*3072}")
def dma_wo(half):
    for q in range(4):
        dma(SWO, vWO, sWOO, sM1K, (half*4+q)*8192)
        e(f"s_add_u32 s{sWOO}, s{sWOO}, {64*1024}")

def lcg(dst, src):
    e(f"s_mul_i32 s{dst}, s{src}, 1664525")
    e(f"s_add_u32 s{dst}, s{dst}, 1013904223")
    e(f"s_xor_b32 s{dst+1}, s{dst}, 0x9e3779b9")

def build_masks():
    e(f"v_and_b32 v{vT0}, 31, v0")
    e(f"v_bfe_u32 v{vT1}, v0, 5, 1")
    e(f"v_lshlrev_b32 v{vT1}, 2, v{vT1}")
    e(f"v_sub_u32 v{vT0}, v{vT0}, v{vT1}")
    e(f"v_mov_b32 v{vT1}, 0xf149f2ca")
    e(f"v_mov_b32 v{vT2}, 0")
    for r in range(16):
        kk = 8*(r//4) + r % 4
        e(f"v_cmp_le_i32 vcc, {kk}, v{vT0}")
        e("s_nop 1")
        e(f"v_cndmask_b32 v{CD+r}, v{vT1}, v{vT2}, vcc")
        e(f"v_cndmask_b32 v{CF+r}, v{vT2}, v{vT1}, vcc")

def poll(name, voff, soff, tok, nwords):
    e(f"s_mov_b32 s{sCNT}, 0")
    lab(name)
    e(f"buffer_load_dwordx{nwords} {vr(vT0 + 1, nwords)}, v{voff}, {sr(SWS,4)}, s{soff} offen sc1")
    e(f"s_add_u32 s{sCNT}, s{sCNT}, 1")
    e("s_waitcnt vmcnt(0)")
    e(f"v_xor_b32 v{vT0+1}, s{tok}, v{vT0+1}")
    e(f"v_xor_b32 v{vT0+2}, s{tok+1}, v{vT0+2}")
    if nwords == 4:
        e(f"v_xor_b32 v{vT0+3}, s{tok}, v{vT0+3}")
        e(f"v_xor_b32 v{vT0+4}, s{tok+1}, v{vT0+4}")
        e(f"v_or3_b32 v{vT0+1}, v{vT0+1}, v{vT0+3}, v{vT0+4}")
    e(f"v_or_b32 v{vT0+1}, v{vT0+1}, v{vT0+2}")
    e(f"v_cmp_ne_u32 vcc, 0, v{vT0+1}")
    e(f"s_cbranch_vccz {name}_ok")
    e(f"s_cmp_lt_u32 s{sCNT}, 0x400000")
    e(f"s_cbranch_scc1 {name}")
    lab(name + "_ok")

def flag_store(soff, tok):
    e(f"v_mov_b32 v{vT0+1}, s{tok}")
    e(f"v_mov_b32 v{vT0+2}, s{tok+1}")
    e(f"v_mov_b32 v{vT0}, 0")
    e("s_mov_b64 exec, 1")
    e(f"buffer_store_dwordx2 {vr(vT0+1,2)}, v{vT0}, {sr(SWS,4)}, s{soff} offen sc1")
    e("s_mov_b64 exec, -1")

MF = "v_mfma_f32_32x32x16_bf16"

def prologue():
    e("s_cmp_ge_u32 s2, 256")
    e("s_cbranch_scc1 L_end")
    e("s_load_dwordx16 s[36:51], s[0:1], 0")
    e("s_load_dwordx2 s[52:53], s[0:1], 64")
    if DIAG:
        e(f"s_memrealtime {sr(sT2,2)}"); e("s_waitcnt lgkmcnt(0)"); e(f"s_mov_b32 s{sTS+20}, s{sT2}")
    ts()
    e(f"v_lshrrev_b32 v{vT0}, 6, v0")
    e(f"s_and_b32 s{sT0}, s2, 7")
    e(f"v_readfirstlane_b32 s{sWv}, v{vT0}")
    e(f"s_lshr_b32 s{sT1}, s2, 3")
    e(f"s_lshr_b32 s{sB}, s{sT0}, 2")
    e(f"s_bfe_u32 s{sI}, s{sT0}, 0x10001")
    e(f"s_lshl_b32 s{sI}, s{sI}, 3")
    e(f"s_lshr_b32 s{sT2}, s{sT1}, 2")
    e(f"s_add_u32 s{sI}, s{sI}, s{sT2}")
    e(f"s_and_b32 s{sG}, s{sT0}, 1")
    e(f"s_lshl_b32 s{sG}, s{sG}, 2")
    e(f"s_and_b32 s{sT2}, s{sT1}, 3")
    e(f"s_add_u32 s{sG}, s{sG}, s{sT2}")
    e("v_and_b32 v0, 63, v0")
    e(f"s_lshr_b32 s{sHP}, s{sWv}, 2")
    e(f"s_sub_u32 s{sT2}, 7, s{sWv}")
    e(f"s_cmp_lt_u32 s{sWv}, 4")
    e(f"s_cselect_b32 s{sTB}, s{sWv}, s{sT2}")
    e(f"s_lshl_b32 s{sM2K}, s{sWv}, 11")
    e(f"s_lshl_b32 s{sM1K}, s{sWv}, 10")
    e(f"v_lshrrev_b32 v{vT0}, 3, v0")
    e(f"v_and_b32 v{vT1}, 7, v0")
    e(f"v_lshrrev_b32 v{vT2}, 4, v0")
    e(f"v_xor_b32 v{vT3}, v{vT1}, v{vT2}")
    e(f"s_lshl_b32 s{sT2}, s{sWv}, 4")
    e(f"v_add_u32 v{vT4}, s{sT2}, v{vT0}")
    e(f"v_lshlrev_b32 v{vT4}, 10, v{vT4}")
    e(f"v_lshl_add_u32 v{vX0}, v{vT3}, 4, v{vT4}")
    e(f"v_xor_b32 v{vT3}, 4, v{vT3}")
    e(f"v_lshl_add_u32 v{vX1}, v{vT3}, 4, v{vT4}")
    e(f"v_add_u32 v{vX1}, 8192, v{vX1}")
    e(f"v_and_b32 v{vT2}, 1, v{vT2}")
    e(f"v_lshlrev_b32 v{vT2}, 2, v{vT2}")
    e(f"v_xor_b32 v{vT1}, v{vT1}, v{vT2}")
    e(f"s_lshl_b32 s{sT2}, s{sWv}, 3")
    e(f"v_add_u32 v{vT0}, s{sT2}, v{vT0}")
    e(f"v_mul_u32_u24 v{vT4}, 3072, v{vT0}")
    e(f"v_lshl_add_u32 v{vW}, v{vT1}, 4, v{vT4}")
    e(f"v_lshlrev_b32 v{vT4}, 10, v{vT0}")
    e(f"v_lshl_add_u32 v{vWO}, v{vT1}, 4, v{vT4}")
    e(f"s_lshl_b32 s{sXO}, s{sI}, 17")
    e(f"s_lshl_b32 s{sWQO}, s{sG}, 7")
    e(f"s_add_u32 s{sWKO}, s{sWQO}, 1024")
    e(f"s_add_u32 s{sWVO}, s{sWQO}, 2048")
    e(f"s_mov_b32 s{sWOO}, s{sWQO}")
    e("s_waitcnt lgkmcnt(0)")
    e(f"s_cmp_eq_u32 s{sB}, 0")
    e(f"s_cselect_b64 {sr(SX,2)}, s[36:37], s[42:43]")
    e(f"s_cselect_b64 {sr(SW,2)}, s[38:39], s[44:45]")
    e(f"s_cselect_b64 {sr(SWO,2)}, s[40:41], s[46:47]")
    e(f"s_mov_b32 s{SX+2}, {2048*512*2}"); e(f"s_mov_b32 s{SX+3}, 0x20000")
    e(f"s_mov_b32 s{SW+2}, {512*1536*2}"); e(f"s_mov_b32 s{SW+3}, 0x20000")
    for c in range(5): dma_chunk(SLOT[c])
    e(f"s_mov_b32 s{SWO+2}, {512*512*2}"); e(f"s_mov_b32 s{SWO+3}, 0x20000")
    e(f"s_mov_b64 {sr(SOUT,2)}, s[48:49]"); e(f"s_mov_b32 s{SOUT+2}, {2048*1024*2}"); e(f"s_mov_b32 s{SOUT+3}, 0x20000")
    e(f"s_mov_b64 {sr(SWS,2)}, s[52:53]"); e(f"s_mov_b32 s{SWS+2}, {WS_SIZE}"); e(f"s_mov_b32 s{SWS+3}, 0x20000")
    e(f"s_lshl_b32 s{sT0}, s{sB}, 5")
    e(f"s_add_u32 s{sT0}, s{sT0}, s{sI}")
    e(f"s_lshl_b32 s{sT0}, s{sT0}, 2")
    e(f"s_load_dword s{sEP}, s[52:53], s{sT0}")
    e(f"s_add_u32 s{sT1}, s{sT0}, 4")
    e(f"s_load_dword s{sEP+1}, s[52:53], s{sT1}")
    e(f"s_add_u32 s{sT1}, s{sT0}, 8")
    e(f"s_load_dword s{sEP+2}, s[52:53], s{sT1}")
    e(f"v_and_b32 v{vT0}, 31, v0")
    e(f"v_lshrrev_b32 v{vT1}, 5, v0")
    e(f"v_bfe_u32 v{vT2}, v0, 1, 3")
    e(f"s_lshl_b32 s{sT2}, s{sTB}, 12")
    e(f"v_lshlrev_b32 v{vT3}, 7, v{vT0}")
    e(f"v_add_u32 v{vT3}, s{sT2}, v{vT3}")
    for s in range(4):
        e(f"v_add_u32 v{vT4}, {2*s}, v{vT1}")
        e(f"v_xor_b32 v{vT4}, v{vT4}, v{vT2}")
        e(f"v_lshl_add_u32 v{vXA+s}, v{vT4}, 4, v{vT3}")
    e(f"v_bfe_u32 v{vT0}, v0, 2, 2")
    e(f"v_lshl_add_u32 v{vT2}, v{vT1}, 3, v{vT0}")
    e(f"v_lshlrev_b32 v{vT2}, 7, v{vT2}")
    e(f"v_bfe_u32 v{vT3}, v0, 4, 1")
    e(f"v_lshlrev_b32 v{vT3}, 1, v{vT3}")
    e(f"v_bfe_u32 v{vT4}, v0, 1, 1")
    e(f"v_add_u32 v{vT3}, v{vT3}, v{vT4}")
    e(f"s_lshl_b32 s{sT2}, s{sHP}, 2")
    e(f"v_add_u32 v{vT3}, s{sT2}, v{vT3}")
    e(f"v_bfe_u32 v{vT4}, v0, 3, 1")
    e(f"v_lshlrev_b32 v{vT4}, 2, v{vT4}")
    e(f"v_xor_b32 v{vT3}, v{vT3}, v{vT4}")
    e(f"v_lshl_add_u32 v{vT2}, v{vT3}, 4, v{vT2}")
    e(f"v_and_b32 v{vT3}, 1, v0")
    e(f"v_lshl_add_u32 v{vWA}, v{vT3}, 3, v{vT2}")
    e(f"v_lshlrev_b32 v{vL16}, 4, v0")
    build_masks()
    e("s_waitcnt lgkmcnt(0)")
    lcg(sTOK, sEP + 2)
    e(f"s_cmp_lt_u32 s{sWv}, 4")
    e(f"s_cselect_b32 s{sT0}, s{sEP}, s{sEP+1}")
    lcg(sTOKP, sT0)
    e(f"s_mov_b32 s{sVMASK}, 0x0000ffff"); e(f"s_mov_b32 s{sVMASK+1}, 0x0000ffff")

LA = 2
def p1_reads(n):
    s = n % 4
    wb = WB + 8 * (n % 3)
    e(f"ds_read_b128 {vr(XF+4*n,4)}, v{vXA+s}")
    for j, base in enumerate((16384, 24576)):
        e(f"ds_read_b64_tr_b16 {vr(wb+4*j,2)}, v{vWA} offset:{base+s*2048}")
        e(f"ds_read_b64_tr_b16 {vr(wb+4*j+2,2)}, v{vWA} offset:{base+s*2048+512}")
def p1_boundary(c):
    vm = {0: 16, 1: 12}.get(c, 8)
    e(f"s_waitcnt vmcnt({vm})")
    e("s_barrier")
    if c == 0: ts()
    if c >= 1:
        d = SLOT[c % 5] - SLOT[(c-1) % 5]
        for s in range(4): e(f"v_add_u32 v{vXA+s}, {d & 0xffffffff}, v{vXA+s}")
        e(f"v_add_u32 v{vWA}, {d & 0xffffffff}, v{vWA}")
def p1_refill(c):
    if c in (2, 3, 4): dma_chunk(SLOT[c-2])
    elif c == 5: dma_wq(0)
    elif c == 6: dma_wq(1)
    elif c == 7: dma_wo(0)

def phase1():
    cm("---- pass A: K^T and V tiles ----")
    p1_boundary(0)
    for n in range(LA): p1_reads(n)
    for n in range(32):
        m = n + LA
        if m < 32:
            if m % 4 == 0: p1_boundary(m // 4)
            p1_reads(m)
            out = 5 * LA
        else:
            out = 5 * (31 - n)
        e(f"s_waitcnt lgkmcnt({out})")
        wb = WB + 8 * (n % 3)
        c0 = "0" if n == 0 else None
        e(f"{MF} {vr(ACCK,16)}, {vr(wb,4)}, {vr(XF+4*n,4)}, {c0 or vr(ACCK,16)}")
        e(f"{MF} {vr(ACCV,16)}, {vr(XF+4*n,4)}, {vr(wb+4,4)}, {c0 or vr(ACCV,16)}")
        if m < 32 and m % 4 == 0: p1_refill(m // 4)
    e("s_waitcnt vmcnt(4)")
    e("s_barrier")
    ts()
    dma_wo(1)
    e(f"v_add_u32 v{vWA}, {SLOT[3]-SLOT[2]}, v{vWA}")
    LB = 4
    def rq(n):
        wb = WB + 4 * (n % 6)
        e(f"ds_read_b64_tr_b16 {vr(wb,2)}, v{vWA} offset:{n*2048}")
        e(f"ds_read_b64_tr_b16 {vr(wb+2,2)}, v{vWA} offset:{n*2048+512}")
    for n in range(LB): rq(n)
    cm("---- K/V epilogue: pack, publish, stage own block ----")
    e(f"s_lshl_b32 s{sT0}, s{sB}, 3"); e(f"s_add_u32 s{sT0}, s{sT0}, s{sG}")
    e(f"s_lshl_b32 s{sT0}, s{sT0}, 4"); e(f"s_add_u32 s{sT0}, s{sT0}, s{sI}")
    e(f"s_lshl_b32 s{sFO}, s{sT0}, 7")
    e(f"s_lshl_b32 s{sT1}, s{sTB}, 4"); e(f"s_add_u32 s{sFO}, s{sFO}, s{sT1}")
    e(f"s_lshl_b32 s{sT1}, s{sHP}, 3"); e(f"s_add_u32 s{sFO}, s{sFO}, s{sT1}")
    e(f"s_add_u32 s{sFO}, s{sFO}, {WS_KVFLAG}")
    e(f"s_lshl_b32 s{sKVO}, s{sT0}, 15")
    e(f"s_lshl_b32 s{sT1}, s{sTB}, 13"); e(f"s_add_u32 s{sKVO}, s{sKVO}, s{sT1}")
    e(f"s_lshl_b32 s{sT2}, s{sHP}, 11"); e(f"s_add_u32 s{sKVO}, s{sKVO}, s{sT2}")
    e(f"s_add_u32 s{sKVO}, s{sKVO}, {WS_KV}")
    e(f"v_and_b32 v{vT0}, 15, v0"); e(f"v_lshlrev_b32 v{vT0}, 4, v{vT0}")
    e(f"v_bfe_u32 v{vT1}, v0, 4, 1"); e(f"v_lshl_add_u32 v{vT0}, v{vT1}, 10, v{vT0}")
    e(f"v_lshrrev_b32 v{vT1}, 5, v0"); e(f"v_lshl_add_u32 v{vT0}, v{vT1}, 8, v{vT0}")
    e(f"v_add_u32 v{vT0}, 4096, v{vT0}")
    e(f"s_sub_u32 s{sT3}, 90112, s{sT1}"); e(f"s_add_u32 s{sT3}, s{sT3}, s{sT2}")
    e(f"v_add_u32 v{vT1}, s{sT3}, v{vL16}")
    e(f"v_add_u32 v{vT2}, s{sT3}, v{vT0}")
    for j in range(8): e(f"v_cvt_pk_bf16_f32 v{KD+j}, v{ACCK+2*j}, v{ACCK+2*j+1}")
    for j in range(8): e(f"v_cvt_pk_bf16_f32 v{ACCK+j}, v{ACCV+2*j}, v{ACCV+2*j+1}")
    e(f"buffer_store_dwordx4 {vr(KD,4)}, v{vL16}, {sr(SWS,4)}, s{sKVO} offen sc1")
    e(f"buffer_store_dwordx4 {vr(KD+4,4)}, v{vL16}, {sr(SWS,4)}, s{sKVO} offen offset:1024 sc1")
    e(f"buffer_store_dwordx4 {vr(ACCK,4)}, v{vT0}, {sr(SWS,4)}, s{sKVO} offen sc1")
    e(f"buffer_store_dwordx4 {vr(ACCK+4,4)}, v{vT0}, {sr(SWS,4)}, s{sKVO} offen offset:512 sc1")
    cm("---- pass B: Q^T tile ----")
    for n in range(32):
        m = n + LB
        if m < 32: rq(m)
        left = min(LB, 31 - n)
        extra = 4 if (n >= 1 and n <= LB) else 0
        cnt = 2 * left + (4 if n == 0 else 0) * 0
        if n >= 1 and n <= LB: cnt = 2 * left + 4 if n + LB > LB else cnt
        e(f"s_waitcnt lgkmcnt({min(cnt,15)})")
        wb = WB + 4 * (n % 6)
        e(f"{MF} {vr(ACCQ,16)}, {vr(wb,4)}, {vr(XF+4*n,4)}, {'0' if n == 0 else vr(ACCQ,16)}")
        if n == 0:
            e(f"ds_write_b128 v{vT1}, {vr(KD,4)}")
            e(f"ds_write_b128 v{vT1}, {vr(KD+4,4)} offset:1024")
            e(f"ds_write_b128 v{vT2}, {vr(ACCK,4)}")
            e(f"ds_write_b128 v{vT2}, {vr(ACCK+4,4)} offset:512")
        if n == 20:
            e("s_waitcnt vmcnt(0)")
            flag_store(sFO, sTOK)
    ts()

def handoff_kv():
    cm("---- fetch the K/V blocks of the two previous row blocks ----")
    e(f"s_add_u32 s{sT0}, s{sI}, s{sHP}")
    e(f"s_cmp_lt_u32 s{sT0}, 2")
    e("s_cselect_b32 s%d, 1, 0" % sDONE)
    e("s_cbranch_scc1 L_nokv")
    e(f"s_sub_u32 s{sT0}, s{sT0}, 2")
    e(f"s_lshl_b32 s{sT1}, s{sB}, 3"); e(f"s_add_u32 s{sT1}, s{sT1}, s{sG}")
    e(f"s_lshl_b32 s{sT1}, s{sT1}, 4"); e(f"s_add_u32 s{sT0}, s{sT0}, s{sT1}")
    e(f"s_and_b32 s{sT1}, s{sWv}, 3")
    e(f"s_lshl_b32 s{sFO}, s{sT0}, 7"); e(f"s_lshl_b32 s{sT2}, s{sT1}, 4")
    e(f"s_add_u32 s{sFO}, s{sFO}, s{sT2}"); e(f"s_add_u32 s{sFO}, s{sFO}, {WS_KVFLAG}")
    e(f"s_lshl_b32 s{sKVO}, s{sT0}, 15"); e(f"s_lshl_b32 s{sT2}, s{sT1}, 13")
    e(f"s_add_u32 s{sKVO}, s{sKVO}, s{sT2}"); e(f"s_add_u32 s{sKVO}, s{sKVO}, {WS_KV}")
    e(f"v_mov_b32 v{vT0}, 0")
    poll("L_pkv", vT0, sFO, sTOKP, 4)
    e(f"s_add_u32 s{sT0}, s{sKVO}, 4096")
    for j in range(8):
        e(f"buffer_load_dwordx4 {vr(STG+4*j,4)}, v{vL16}, {sr(SWS,4)}, s{sKVO if j < 4 else sT0} offen offset:{(j%4)*1024} sc1")
    lab("L_nokv")
    ts()
    cm("Q: scale by log2(e)/4, pack")
    e(f"s_mov_b32 s{sT0}, 0x3eb8aa3b")
    for j in range(16): e(f"v_mul_f32 v{ACCQ+j}, s{sT0}, v{ACCQ+j}")
    for j in range(8): e(f"v_cvt_pk_bf16_f32 v{QF+j}, v{ACCQ+2*j}, v{ACCQ+2*j+1}")
    for j in range(16): e(f"v_mov_b32 v{CP+j}, 0")
    for j in range(16): e(f"v_mov_b32 v{VF[0]+j}, 0x3f803f80")
    e(f"s_lshl_b32 s{sT0}, s{sTB}, 13"); e(f"s_sub_u32 s{sT0}, {90112+8192}, s{sT0}")
    e(f"s_lshl_b32 s{sT1}, s{sHP}, 11"); e(f"s_add_u32 s{sT0}, s{sT0}, s{sT1}")
    e(f"v_add_u32 v{vKA}, s{sT0}, v{vL16}")
    e(f"v_and_b32 v{vT0}, 15, v0"); e(f"v_lshlrev_b32 v{vT0}, 4, v{vT0}")
    e(f"v_lshrrev_b32 v{vT1}, 5, v0"); e(f"v_lshl_add_u32 v{vT0}, v{vT1}, 8, v{vT0}")
    e(f"s_sub_u32 s{sT0}, s{sT0}, 4096")
    e(f"v_add_u32 v{vVA}, s{sT0}, v{vT0}")
    e(f"v_add_u32 v{vVA2}, 0x10000, v{vVA}")
    e(f"s_lshl_b32 s{sT0}, s{sI}, 2"); e(f"s_add_u32 s{sT0}, s{sT0}, s{sTB}")
    e(f"s_min_u32 s{sLAST}, s{sT0}, 8")
    e(f"s_lshl_b32 s{sT1}, s{sB}, 6"); e(f"s_add_u32 s{sT0}, s{sT0}, s{sT1}")
    e(f"s_lshl_b32 s{sOLD}, s{sT0}, 15"); e(f"s_lshl_b32 s{sT1}, s{sHP}, 11")
    e(f"s_add_u32 s{sOLD}, s{sOLD}, s{sT1}"); e(f"s_add_u32 s{sOLD}, s{sOLD}, {WS_O}")
    e(f"s_lshl_b32 s{sT1}, s{sG}, 12"); e(f"s_add_u32 s{sOST}, s{sOLD}, s{sT1}")
    e(f"s_lshl_b32 s{sFO}, s{sT0}, 9"); e(f"s_lshl_b32 s{sT1}, s{sHP}, 8")
    e(f"s_add_u32 s{sFO}, s{sFO}, s{sT1}"); e(f"s_add_u32 s{sFO}, s{sFO}, {WS_OFLAG}")
    e(f"v_and_b32 v{vFLG}, 7, v0"); e(f"v_lshlrev_b32 v{vFLG}, 3, v{vFLG}")
    e("s_waitcnt lgkmcnt(0)")
    e("s_barrier")
    e(f"s_cmp_eq_u32 s{sDONE}, 1")
    e("s_cbranch_scc1 L_nokv2")
    e(f"s_lshl_b32 s{sT0}, s{sWv}, 13"); e(f"s_sub_u32 s{sT0}, 155648, s{sT0}")
    e(f"v_add_u32 v{vT0}, s{sT0}, v{vL16}")
    for j in range(8):
        e(f"s_waitcnt vmcnt({7-j})")
        e(f"ds_write_b128 v{vT0}, {vr(STG+4*j,4)} offset:{j*1024}")
    lab("L_nokv2")
    e("s_waitcnt lgkmcnt(0)")
    e("s_barrier")
    ts()

def rdK(d):
    e(f"ds_read_b128 {vr(KF[d%2],4)}, v{vKA} offset:{(d-1)*8192}")
def rdV(d):
    a, off = (vVA, d*8192) if d < 8 else (vVA2, 0)
    e(f"s_mov_b64 exec, {sr(sVMASK,2)}")
    e(f"ds_read_b128 {vr(VF[d%2],4)}, v{a} offset:{off}")
    e(f"ds_read_b128 {vr(VF[d%2]+4,4)}, v{a} offset:{off+512}")
    e("s_mov_b64 exec, -1")
def ctup(d): return CD if d == 0 else (CF if d == 8 else CP)

def attention(hh):
    q = QF + 4*hh; kd = KD + 4*hh
    cm(f"---- attention, head {hh} of the wave's pair ----")
    e(f"s_mov_b32 s{sFB}, 0")
    lab(f"L_att{hh}")
    rdK(1); rdV(0)
    e(f"{MF} {vr(S[0],16)}, {vr(kd,4)}, {vr(q,4)}, {vr(CD,16)}")
    for k in range(9):
        s = S[k%2]; p = P[k%2]; pp = P[(k-1)%2]; vp = VF[(k-1)%2]
        e("s_waitcnt lgkmcnt(2)")
        if k < 8:
            e(f"{MF} {vr(S[(k+1)%2],16)}, {vr(KF[(k+1)%2],4)}, {vr(q,4)}, {vr(ctup(k+1),16)}")
        if k == 0: e("s_nop 9")
        for r in range(6): e(f"v_exp_f32 v{s+r}, v{s+r}")
        if k >= 1: e(f"{MF} {vr(OA,16)}, {vr(vp,4)}, {vr(pp,4)}, {'0' if k == 1 else vr(OA,16)}")
        for r in range(6, 12): e(f"v_exp_f32 v{s+r}, v{s+r}")
        if k >= 1: e(f"{MF} {vr(OA,16)}, {vr(vp+4,4)}, {vr(pp+4,4)}, {vr(OA,16)}")
        if k < 7: rdK(k+2)
        if k < 8:
            rdV(k+1)
        for r in range(12, 16): e(f"v_exp_f32 v{s+r}, v{s+r}")
        for j in range(8): e(f"v_cvt_pk_bf16_f32 v{p+j}, v{s+2*j}, v{s+2*j+1}")
        if hh == 1 and k == 4:
            e("s_waitcnt vmcnt(0)")
            flag_store(sOWNF, sTOK)
            e(f"s_mov_b32 s{sDONE}, 1")
        if k < 8:
            e(f"s_cmp_eq_u32 s{sLAST}, {k}")
            e(f"s_cbranch_scc1 L_x{hh}_{k}")
    def tail(k):
        e("s_waitcnt lgkmcnt(0)")
        e("s_nop 0")
        e(f"{MF} {vr(OA,16)}, {vr(VF[k%2],4)}, {vr(P[k%2],4)}, {'0' if k == 0 else vr(OA,16)}")
        e(f"{MF} {vr(OA,16)}, {vr(VF[k%2]+4,4)}, {vr(P[k%2]+4,4)}, {vr(OA,16)}")
    tail(8)
    lab(f"L_fin{hh}")
    e("s_nop 11")
    e(f"v_mov_b32 v{vT0}, v{OA+8}")
    e(f"v_rcp_f32 v{vT1}, v{OA+8}")
    for r in range(8): e(f"v_fma_f32 v{vT0}, v{OA+r}, 0, v{vT0}")
    e(f"s_mov_b32 s{sT0}, 0x71800000")
    e(f"s_mov_b32 s{sT1}, 0x0d800000")
    e(f"v_cmp_nlt_f32 vcc, v{vT0}, s{sT0}" if False else f"v_cmp_ngt_f32 vcc, s{sT0}, v{vT0}")
    e(f"v_cmp_nlt_f32 {sr(sT2,2)}, s{sT1}, v{vT0}")
    for r in range(8): e(f"v_mul_f32 v{OA+r}, v{OA+r}, v{vT1}")
    e(f"s_or_b64 vcc, vcc, {sr(sT2,2)}")
    e(f"s_cbranch_scc1 L_fb{hh}")
    lab(f"L_ok{hh}")
    for j in range(4): e(f"v_cvt_pk_bf16_f32 v{OA+j}, v{OA+2*j}, v{OA+2*j+1}")
    e(f"buffer_store_dwordx4 {vr(OA,4)}, v{vL16}, {sr(SWS,4)}, s{sOST} offen offset:{hh*1024} sc1")
    def stubs():
        for k in range(8):
            lab(f"L_x{hh}_{k}")
            tail(k)
            e(f"s_branch L_fin{hh}")
        lab(f"L_fb{hh}")
        e(f"s_cmp_eq_u32 s{sFB}, 1")
        e(f"s_cbranch_scc1 L_fbdone{hh}")
        e(f"s_mov_b32 s{sFB}, 1")
        e(f"{MF} {vr(S[0],16)}, {vr(kd,4)}, {vr(q,4)}, {vr(CD,16)}")
        e(f"v_mov_b32 v{vT0}, 0xff7fffff")
        e(f"v_mov_b32 v{vT2}, v{vKA}")
        e(f"s_mov_b32 s{sCNT}, 0")
        lab(f"L_fbl{hh}")
        e("s_nop 15")
        for j in range(8): e(f"v_max3_f32 v{vT0}, v{S[0]+2*j}, v{S[0]+2*j+1}, v{vT0}")
        e(f"s_cmp_eq_u32 s{sCNT}, s{sLAST}")
        e(f"s_cbranch_scc1 L_fbm{hh}")
        e(f"s_add_u32 s{sCNT}, s{sCNT}, 1")
        e(f"ds_read_b128 {vr(KF[0],4)}, v{vT2}")
        e(f"v_add_u32 v{vT2}, 8192, v{vT2}")
        e("s_waitcnt lgkmcnt(0)")
        e(f"s_cmp_eq_u32 s{sCNT}, 8")
        e(f"s_cbranch_scc1 L_fbf{hh}")
        e(f"{MF} {vr(S[0],16)}, {vr(KF[0],4)}, {vr(q,4)}, 0")
        e(f"s_branch L_fbl{hh}")
        lab(f"L_fbf{hh}")
        e(f"{MF} {vr(S[0],16)}, {vr(KF[0],4)}, {vr(q,4)}, {vr(CF,16)}")
        e(f"s_branch L_fbl{hh}")
        lab(f"L_fbm{hh}")
        e(f"v_mov_b32 v{vT1}, v{vT0}")
        e("s_nop 1")
        e(f"v_permlane32_swap_b32 v{vT0}, v{vT1}")
        e("s_nop 1")
        e(f"v_max_f32 v{vT0}, v{vT0}, v{vT1}")
        for j in range(16):
            e(f"v_sub_f32 v{CD+j}, v{CD+j}, v{vT0}")
            e(f"v_sub_f32 v{CF+j}, v{CF+j}, v{vT0}")
            e(f"v_sub_f32 v{CP+j}, 0, v{vT0}")
        e("s_nop 1")
        e(f"s_branch L_att{hh}")
        lab(f"L_fbdone{hh}")
        e(f"s_branch L_ok{hh}")
    return stubs

def restore_c(tag):
    e(f"s_cmp_eq_u32 s{sFB}, 0")
    e(f"s_cbranch_scc1 {tag}")
    build_masks()
    for j in range(16): e(f"v_mov_b32 v{CP+j}, 0")
    lab(tag)

def outproj(st):
    cm(f"---- out-projection stage {st} ----")
    e(f"s_add_u32 s{sT0}, s{sOLD}, {st*1024}")
    for gq in range(8):
        e(f"buffer_load_dwordx4 {vr(OIN[gq],4)}, v{vL16}, {sr(SWS,4)}, s{sT0} offen sc1")
        if gq < 7: e(f"s_add_u32 s{sT0}, s{sT0}, 4096")
    def rw(gq):
        f = WOF[gq % 2]
        for ct, a in enumerate((vWOA0, vWOA1)):
            e(f"ds_read_b64_tr_b16 {vr(f+4*ct,2)}, v{a} offset:{gq*8192+st*2048}")
            e(f"ds_read_b64_tr_b16 {vr(f+4*ct+2,2)}, v{a} offset:{gq*8192+st*2048+1024}")
    rw(0)
    for gq in range(8):
        if gq < 7: rw(gq+1)
        e(f"s_waitcnt vmcnt({7-gq}) lgkmcnt({4 if gq < 7 else 0})")
        f = WOF[gq % 2]
        for ct in range(2):
            c = "0" if (st == 0 and gq == 0) else vr(OUTA[ct],16)
            e(f"{MF} {vr(OUTA[ct],16)}, {vr(f+4*ct,4)}, {vr(OIN[gq],4)}, {c}")

def phase23():
    e(f"s_mov_b32 s{sDONE}, 0")
    e(f"s_lshl_b32 s{sOWNF}, s{sG}, 3"); e(f"s_add_u32 s{sOWNF}, s{sOWNF}, s{sFO}")
    st0 = attention(0)
    ts()
    restore_c("L_rc0")
    e(f"v_add_u32 v{vKA}, 1024, v{vKA}"); e(f"v_add_u32 v{vVA}, 1024, v{vVA}"); e(f"v_add_u32 v{vVA2}, 1024, v{vVA2}")
    st1 = attention(1)
    ts()
    e(f"v_bfe_u32 v{vT0}, v0, 2, 2")
    e(f"v_lshrrev_b32 v{vT1}, 5, v0")
    e(f"v_lshl_add_u32 v{vT0}, v{vT1}, 2, v{vT0}")
    e(f"v_lshlrev_b32 v{vT0}, 7, v{vT0}")
    e(f"s_lshl_b32 s{sT0}, s{sHP}, 12")
    e(f"v_add_u32 v{vT0}, s{sT0}, v{vT0}")
    e(f"v_bfe_u32 v{vT1}, v0, 1, 1"); e(f"v_lshl_add_u32 v{vT0}, v{vT1}, 3, v{vT0}")
    e(f"v_and_b32 v{vT1}, 1, v0"); e(f"v_lshlrev_b32 v{vT1}, 1, v{vT1}")
    e(f"v_bfe_u32 v{vT2}, v0, 4, 1"); e(f"v_add_u32 v{vT1}, v{vT1}, v{vT2}")
    e(f"v_bfe_u32 v{vT2}, v0, 3, 1"); e(f"v_lshlrev_b32 v{vT2}, 2, v{vT2}")
    e(f"v_xor_b32 v{vT1}, v{vT1}, v{vT2}")
    e(f"v_lshl_add_u32 v{vWOA0}, v{vT1}, 4, v{vT0}")
    e(f"v_xor_b32 v{vWOA1}, 64, v{vWOA0}")
    e(f"s_cmp_eq_u32 s{sDONE}, 1")
    e("s_cbranch_scc1 L_f0done")
    e("s_waitcnt vmcnt(1)")
    flag_store(sOWNF, sTOK)
    lab("L_f0done")
    e("s_barrier")
    poll("L_po0", vFLG, sFO, sTOK, 2)
    e(f"s_add_u32 s{sOWNF}, s{sOWNF}, 128")
    flag_store(sOWNF, sTOK)
    ts()
    e(f"s_or_b32 s{sT0}, s{sG}, s{sWv}")
    e(f"s_cmp_lg_u32 s{sT0}, 0")
    e("s_cbranch_scc1 L_noep")
    e(f"s_lshl_b32 s{sT0}, s{sB}, 5"); e(f"s_add_u32 s{sT0}, s{sT0}, s{sI}"); e(f"s_lshl_b32 s{sT0}, s{sT0}, 2")
    e(f"s_cmp_eq_u32 s{sI}, 15")
    e(f"s_cselect_b32 s{sT1}, 7, 1")
    e(f"v_mov_b32 v{vT0}, s{sEP}")
    e(f"v_writelane_b32 v{vT0}, s{sEP+1}, 1")
    e(f"v_writelane_b32 v{vT0}, s{sEP+2}, 2")
    e(f"s_mov_b32 s{sT2}, 1664525")
    e(f"v_mul_lo_u32 v{vT0}, v{vT0}, s{sT2}")
    e(f"v_add_u32 v{vT0}, 1013904223, v{vT0}")
    e(f"v_lshlrev_b32 v{vT1}, 2, v0")
    e(f"s_mov_b32 exec_lo, s{sT1}"); e("s_mov_b32 exec_hi, 0")
    e(f"buffer_store_dword v{vT0}, v{vT1}, {sr(SWS,4)}, s{sT0} offen")
    e("s_mov_b64 exec, -1")
    e("s_waitcnt vmcnt(0)")
    lab("L_noep")
    e("s_waitcnt vmcnt(0)")
    outproj(0)
    e(f"s_add_u32 s{sFO}, s{sFO}, 128")
    poll("L_po1", vFLG, sFO, sTOK, 2)
    ts()
    outproj(1)
    cm("---- pairwise reduction over the two head-pair waves, pack, store ----")
    e(f"s_lshl_b32 s{sT0}, s{sWv}, 12"); e(f"s_add_u32 s{sT0}, s{sT0}, 65536")
    e(f"v_add_u32 v{vT0}, s{sT0}, v{vL16}")
    e(f"s_sub_u32 s{sT1}, 7, s{sWv}")
    e(f"s_lshl_b32 s{sT1}, s{sT1}, 12"); e(f"s_add_u32 s{sT1}, s{sT1}, 65536")
    e(f"v_add_u32 v{vT1}, s{sT1}, v{vL16}")
    e(f"s_lshl_b32 s{sT0}, s{sI}, 2"); e(f"s_add_u32 s{sT0}, s{sT0}, s{sTB}"); e(f"s_lshl_b32 s{sT0}, s{sT0}, 16")
    e(f"s_lshl_b32 s{sT1}, s{sB}, 10"); e(f"s_add_u32 s{sT0}, s{sT0}, s{sT1}")
    e(f"s_lshl_b32 s{sT1}, s{sG}, 7"); e(f"s_add_u32 s{sT0}, s{sT0}, s{sT1}")
    e(f"s_lshl_b32 s{sT1}, s{sHP}, 6"); e(f"s_add_u32 s{sT0}, s{sT0}, s{sT1}")
    e(f"v_and_b32 v{vT2}, 31, v0"); e(f"v_lshlrev_b32 v{vT2}, 11, v{vT2}")
    e(f"v_lshrrev_b32 v{vT3}, 5, v0"); e(f"v_lshl_add_u32 v{vT2}, v{vT3}, 5, v{vT2}")
    e(f"s_cmp_eq_u32 s{sHP}, 0")
    e("s_cbranch_scc1 L_red0")
    for keep in (1, 0):
        if keep == 0: lab("L_red0")
        give = OUTA[1-keep]; mine = OUTA[keep]
        e("s_nop 3")
        for j in range(4): e(f"ds_write_b128 v{vT0}, {vr(give+4*j,4)} offset:{j*1024}")
        e("s_waitcnt lgkmcnt(0)")
        e("s_barrier")
        for j in range(4): e(f"ds_read_b128 {vr(S[0]+4*j,4)}, v{vT1} offset:{j*1024}")
        for j in range(4):
            e(f"s_waitcnt lgkmcnt({3-j})")
            for r in range(4): e(f"v_add_f32 v{mine+4*j+r}, v{mine+4*j+r}, v{S[0]+4*j+r}")
        for j in range(8): e(f"v_cvt_pk_bf16_f32 v{mine+j}, v{mine+2*j}, v{mine+2*j+1}")
        e(f"buffer_store_dwordx4 {vr(mine,4)}, v{vT2}, {sr(SOUT,4)}, s{sT0} offen")
        e(f"buffer_store_dwordx4 {vr(mine+4,4)}, v{vT2}, {sr(SOUT,4)}, s{sT0} offen offset:16")
        if keep == 1: e("s_branch L_stored")
    lab("L_stored")
    if DIAG:
        e("s_waitcnt vmcnt(0)")
        ts()
        e(f"s_memrealtime {sr(sT2,2)}"); e("s_waitcnt lgkmcnt(0)"); e(f"s_mov_b32 s{sTS+21}, s{sT2}")
        for n in list(range(tsn[0])) + [20, 21]:
            e(f"v_writelane_b32 v{vT0}, s{sTS+n}, {n}")
        e(f"s_lshl_b32 s{sT0}, s2, 3"); e(f"s_add_u32 s{sT0}, s{sT0}, s{sWv}"); e(f"s_lshl_b32 s{sT0}, s{sT0}, 7")
        e(f"s_add_u32 s{sT0}, s{sT0}, {WS_DIAG}")
        e(f"v_lshlrev_b32 v{vT1}, 2, v0")
        e("s_mov_b32 exec_lo, -1"); e("s_mov_b32 exec_hi, 0")
        e(f"buffer_store_dword v{vT0}, v{vT1}, {sr(SWS,4)}, s{sT0} offen")
    lab("L_end")
    e("s_endpgm")
    st0(); st1()

hdr = open("cdna_kernels/%s.s.ref" % NAME).read().split("\n")
out = [l for l in hdr if l.startswith(";") and "@launch" not in l and "Override" not in l and "grid=ceil" not in l]
out.append("; @launch grid=(256,1,1) block=(512,1,1) lds=163840")
out += ['.amdgcn_target "amdgcn-amd-amdhsa--gfx950"', ".text", f".globl {NAME}_kernel", ".p2align 8",
        f".type {NAME}_kernel,@function", f"{NAME}_kernel:"]
prologue(); phase1(); handoff_kv(); phase23()
out += L
out += ['.section .rodata,"a"', ".p2align 6", f".amdhsa_kernel {NAME}_kernel",
        "  .amdhsa_next_free_vgpr 256", "  .amdhsa_next_free_sgpr 102", "  .amdhsa_accum_offset 256",
        "  .amdhsa_group_segment_fixed_size 0", "  .amdhsa_kernarg_size 72", "  .amdhsa_user_sgpr_count 2",
        "  .amdhsa_user_sgpr_kernarg_segment_ptr 1", "  .amdhsa_system_sgpr_workgroup_id_x 1", ".end_amdhsa_kernel"]
print("\n".join(out))
```

```python
import sys
DIAG = "--diag" in sys.argv
def opt(name, dflt):
    for a in sys.argv[1:]:
        if a.startswith("--" + name + "="): return a.split("=", 1)[1]
    return dflt
ROT = opt("rot", "i2g")
PRE = 2
NT = int(opt("nt", "2"))
NAME = "concat_heads__sliding_block__sliding_block__prompt"
L = []
def e(s=""): L.append("    " + s)
def lab(s): L.append(s + ":")
def cm(s): L.append("    ; " + s)
def vr(a, n=1): return f"v{a}" if n == 1 else f"v[{a}:{a+n-1}]"
def sr(a, n=1): return f"s{a}" if n == 1 else f"s[{a}:{a+n-1}]"

WS_EPOCH = 0x0
WS_KVFLAG = 0x1000
WS_OFLAG = 0x10000
WS_KV = 0x200000
WS_O = 0x1000000
WS_DIAG = 0x1800000
WS_SIZE = 0x2000000
SX, SW, SWO, SOUT, SWS = 4, 8, 12, 16, 20
sB, sI, sG, sWv, sTB, sHP = 24, 25, 26, 27, 28, 29
sTOK, sTOKP = 30, 32
sXO, sWKO, sWVO, sWQO, sWOO = 34, 35, 54, 55, 56
sM2K, sM1K = 57, 58
sLAST, sFB, sCNT, sT0, sT1, sT2, sT3 = 59, 60, 61, 62, 63, 64, 65
sEP = 68
sVMASK = 72
sKVO, sOST, sOLD, sFO = 74, 75, 76, 77
sDONE = 78
sOWNF = 79
sTM = 66
sC = 3
sTS = 80
vX0, vX1, vW, vWO = 1, 2, 3, 4
vXA = 5
vWA = 9
vL16 = 10
vT0, vT1, vT2, vT3, vT4 = 11, 12, 13, 14, 15
ACCK, ACCV, ACCQ = 16, 32, 48
WB = 64
CD, CF = 88, 104
KD = 120
XF = 128
QF = 64
CP = 128; S = [144, 160]; P = [176, 184]; KF = [192, 196]; VF = [200, 208]; OA = 216
OUTA = [16, 32]
OIN = [48, 52, 56, 60, 72, 76, 80, 84]
WOF = [232, 240]
vKA, vVA, vVA2, vWOA0, vWOA1, vFLG = 248, 249, 250, 251, 252, 253
vVW = 254
STG = 16

SLOT = [0, 32768, 65536, 98304, 131072]
tsn = [0]
ndma = [0]
TSDMA = "--tsdma" in sys.argv
FLAGSTEP = int(opt("fs", "31"))
EARLY = int(opt("early", "1"))
TOUCH = int(opt("touch", "1"))
CPF = int(opt("cpf", "1"))
WOLATE = int(opt("wolate", "2"))
def ts():
    if DIAG:
        n = tsn[0]; tsn[0] += 1
        e(f"s_memtime {sr(sTM,2)}"); e("s_waitcnt lgkmcnt(0)"); e(f"s_mov_b32 s{sTS+n}, s{sTM}")

def dma(srd, voff, soff, ldsbase_s, ldsimm, pol=""):
    e(f"s_add_u32 m0, s{ldsbase_s}, {ldsimm}")
    e("s_nop 0")
    e(f"buffer_load_dwordx4 v{voff}, {sr(srd,4)}, s{soff} offen {pol}lds")
    ndma[0] += 1
    if TSDMA and ndma[0] in (1, 2, 3, 4, 6, 8): ts()

def next_c():
    e(f"s_add_u32 s{sC}, s{sC}, 1")
    e(f"s_and_b32 s{sC}, s{sC}, 7")
sCX, sCW = 98, 99
def dma_piece(slot, j, px="", pw=""):
    if j == 0:
        e(f"s_lshl_b32 s{sCX}, s{sC}, 7")
        e(f"s_mul_i32 s{sCW}, s{sC}, {64*3072}")
        e(f"s_add_u32 s{sCX}, s{sCX}, s{sXO}")
        e(f"s_add_u32 s{sCW}, s{sCW}, s{sWKO}")
        dma(SX, vX0, sCX, sM2K, slot, px)
    elif j == 1: dma(SX, vX1, sCX, sM2K, slot + 1024, px)
    elif j == 2: dma(SW, vW, sCW, sM1K, slot + 16384, pw)
    else:
        e(f"s_add_u32 s{sCW}, s{sCW}, 1024")
        dma(SW, vW, sCW, sM1K, slot + 24576, pw)
        next_c()
def dma_chunk(slot, px="", pw=""):
    for j in range(4): dma_piece(slot, j, px, pw)
def dma_wq_piece(q):
    e(f"s_mul_i32 s{sCW}, s{sC}, {64*3072}")
    e(f"s_add_u32 s{sCW}, s{sCW}, s{sWQO}")
    dma(SW, vW, sCW, sM1K, SLOT[3] + q*8192)
    next_c()
def dma_wo_rot(cnt=8):
    for q in range(cnt):
        e(f"s_lshl_b32 s{sT0}, s{sC}, 13")
        e(f"s_lshl_b32 s{sT1}, s{sC}, 16")
        e(f"s_add_u32 s{sT0}, s{sT0}, s{sM1K}")
        e(f"s_add_u32 s{sT1}, s{sT1}, s{sWOO}")
        dma(SWO, vWO, sT1, sT0, 0)
        next_c()
def dma_wo(half):
    if WOLATE: return
    for q in range(4):
        dma(SWO, vWO, sWOO, sM1K, (half*4+q)*8192)
        e(f"s_add_u32 s{sWOO}, s{sWOO}, {64*1024}")

def lcg(dst, src):
    e(f"s_mul_i32 s{dst}, s{src}, 1664525")
    e(f"s_add_u32 s{dst}, s{dst}, 1013904223")
    e(f"s_xor_b32 s{dst+1}, s{dst}, 0x9e3779b9")

def build_masks():
    e(f"v_and_b32 v{vT0}, 31, v0")
    e(f"v_bfe_u32 v{vT1}, v0, 5, 1")
    e(f"v_lshlrev_b32 v{vT1}, 2, v{vT1}")
    e(f"v_sub_u32 v{vT0}, v{vT0}, v{vT1}")
    e(f"v_mov_b32 v{vT1}, 0xf149f2ca")
    e(f"v_mov_b32 v{vT2}, 0")
    for r in range(16):
        kk = 8*(r//4) + r % 4
        e(f"v_cmp_le_i32 vcc, {kk}, v{vT0}")
        e("s_nop 1")
        e(f"v_cndmask_b32 v{CD+r}, v{vT1}, v{vT2}, vcc")
        e(f"v_cndmask_b32 v{CF+r}, v{vT2}, v{vT1}, vcc")

def poll(name, voff, soff, tok, nwords):
    e(f"s_mov_b32 s{sCNT}, 0")
    lab(name)
    e(f"buffer_load_dwordx{nwords} {vr(vT0 + 1, nwords)}, v{voff}, {sr(SWS,4)}, s{soff} offen sc1")
    e(f"s_add_u32 s{sCNT}, s{sCNT}, 1")
    e("s_waitcnt vmcnt(0)")
    e(f"v_xor_b32 v{vT0+1}, s{tok}, v{vT0+1}")
    e(f"v_xor_b32 v{vT0+2}, s{tok+1}, v{vT0+2}")
    if nwords == 4:
        e(f"v_xor_b32 v{vT0+3}, s{tok}, v{vT0+3}")
        e(f"v_xor_b32 v{vT0+4}, s{tok+1}, v{vT0+4}")
        e(f"v_or3_b32 v{vT0+1}, v{vT0+1}, v{vT0+3}, v{vT0+4}")
    e(f"v_or_b32 v{vT0+1}, v{vT0+1}, v{vT0+2}")
    e(f"v_cmp_ne_u32 vcc, 0, v{vT0+1}")
    e(f"s_cbranch_vccz {name}_ok")
    e(f"s_cmp_lt_u32 s{sCNT}, 0x400000")
    e(f"s_cbranch_scc1 {name}")
    lab(name + "_ok")

def flag_store(soff, tok):
    e(f"v_mov_b32 v{vT0+1}, s{tok}")
    e(f"v_mov_b32 v{vT0+2}, s{tok+1}")
    e(f"v_mov_b32 v{vT0}, 0")
    e("s_mov_b64 exec, 1")
    e(f"buffer_store_dwordx2 {vr(vT0+1,2)}, v{vT0}, {sr(SWS,4)}, s{soff} offen sc1")
    e("s_mov_b64 exec, -1")

MF = "v_mfma_f32_32x32x16_bf16"

def prologue():
    e("s_cmp_ge_u32 s2, 256")
    e("s_cbranch_scc1 L_end")
    e("s_load_dwordx16 s[36:51], s[0:1], 0")
    e("s_load_dwordx2 s[52:53], s[0:1], 64")
    if DIAG:
        e(f"s_memrealtime {sr(sT2,2)}"); e("s_waitcnt lgkmcnt(0)"); e(f"s_mov_b32 s{sTS+20}, s{sT2}")
    ts()
    e(f"v_lshrrev_b32 v{vT0}, 6, v0")
    if CPF:
        e(f"s_getpc_b64 {sr(sT2,2)}")
        lab("L_pc")
        e(f"v_lshlrev_b32 v{vT1}, 6, v0")
        e(f"v_min_u32 v{vT1}, L_last-L_pc, v{vT1}")
        e(f"global_load_dword v255, v{vT1}, {sr(sT2,2)}")
    e(f"s_and_b32 s{sT0}, s2, 7")
    e(f"v_readfirstlane_b32 s{sWv}, v{vT0}")
    e(f"s_lshr_b32 s{sT1}, s2, 3")
    e(f"s_lshr_b32 s{sB}, s{sT0}, 2")
    e(f"s_bfe_u32 s{sI}, s{sT0}, 0x10001")
    e(f"s_lshl_b32 s{sI}, s{sI}, 3")
    e(f"s_lshr_b32 s{sT2}, s{sT1}, 2")
    e(f"s_add_u32 s{sI}, s{sI}, s{sT2}")
    e(f"s_and_b32 s{sG}, s{sT0}, 1")
    e(f"s_lshl_b32 s{sG}, s{sG}, 2")
    e(f"s_and_b32 s{sT2}, s{sT1}, 3")
    e(f"s_add_u32 s{sG}, s{sG}, s{sT2}")
    e("v_and_b32 v0, 63, v0")
    e(f"s_lshr_b32 s{sHP}, s{sWv}, 2")
    e(f"s_sub_u32 s{sT2}, 7, s{sWv}")
    e(f"s_cmp_lt_u32 s{sWv}, 4")
    e(f"s_cselect_b32 s{sTB}, s{sWv}, s{sT2}")
    e(f"s_lshl_b32 s{sM2K}, s{sWv}, 11")
    e(f"s_lshl_b32 s{sM1K}, s{sWv}, 10")
    e(f"v_lshrrev_b32 v{vT0}, 3, v0")
    e(f"v_and_b32 v{vT1}, 7, v0")
    e(f"v_lshrrev_b32 v{vT2}, 4, v0")
    e(f"v_xor_b32 v{vT3}, v{vT1}, v{vT2}")
    e(f"s_lshl_b32 s{sT2}, s{sWv}, 4")
    e(f"v_add_u32 v{vT4}, s{sT2}, v{vT0}")
    e(f"v_lshlrev_b32 v{vT4}, 10, v{vT4}")
    e(f"v_lshl_add_u32 v{vX0}, v{vT3}, 4, v{vT4}")
    e(f"v_xor_b32 v{vT3}, 4, v{vT3}")
    e(f"v_lshl_add_u32 v{vX1}, v{vT3}, 4, v{vT4}")
    e(f"v_add_u32 v{vX1}, 8192, v{vX1}")
    e(f"v_and_b32 v{vT2}, 1, v{vT2}")
    e(f"v_lshlrev_b32 v{vT2}, 2, v{vT2}")
    e(f"v_xor_b32 v{vT1}, v{vT1}, v{vT2}")
    e(f"s_lshl_b32 s{sT2}, s{sWv}, 3")
    e(f"v_add_u32 v{vT0}, s{sT2}, v{vT0}")
    e(f"v_mul_u32_u24 v{vT4}, 3072, v{vT0}")
    e(f"v_lshl_add_u32 v{vW}, v{vT1}, 4, v{vT4}")
    e(f"v_lshlrev_b32 v{vT4}, 10, v{vT0}")
    e(f"v_lshl_add_u32 v{vWO}, v{vT1}, 4, v{vT4}")
    e(f"s_lshl_b32 s{sXO}, s{sI}, 17")
    e(f"s_lshl_b32 s{sWQO}, s{sG}, 7")
    e(f"s_add_u32 s{sWKO}, s{sWQO}, 1024")
    e(f"s_mov_b32 s{sWOO}, s{sWQO}")
    if ROT == "ig": e(f"s_add_u32 s{sC}, s{sI}, s{sG}")
    elif ROT == "i2g":
        e(f"s_lshl_b32 s{sC}, s{sG}, 1"); e(f"s_add_u32 s{sC}, s{sC}, s{sI}")
    elif ROT == "i2gh":
        e(f"s_lshl_b32 s{sC}, s{sG}, 1"); e(f"s_add_u32 s{sC}, s{sC}, s{sI}")
        e(f"s_lshr_b32 s{sT2}, s{sG}, 2"); e(f"s_add_u32 s{sC}, s{sC}, s{sT2}")
    else: e(f"s_mov_b32 s{sC}, 0")
    e(f"s_and_b32 s{sC}, s{sC}, 7")
    e("s_waitcnt lgkmcnt(0)")
    ts()
    e(f"s_cmp_eq_u32 s{sB}, 0")
    e(f"s_cselect_b64 {sr(SX,2)}, s[36:37], s[42:43]")
    e(f"s_cselect_b64 {sr(SW,2)}, s[38:39], s[44:45]")
    e(f"s_cselect_b64 {sr(SWO,2)}, s[40:41], s[46:47]")
    e(f"s_mov_b32 s{SX+2}, {2048*512*2}"); e(f"s_mov_b32 s{SX+3}, 0x20000")
    e(f"s_mov_b32 s{SW+2}, {512*1536*2}"); e(f"s_mov_b32 s{SW+3}, 0x20000")
    def pre_chunk(c): dma_chunk(SLOT[c], "nt " if c < NT else "", "nt " if (c == 0 and NT) else "")
    for c in range(1 if EARLY else PRE): pre_chunk(c)
    ts()
    e(f"s_mov_b32 s{SWO+2}, {512*512*2}"); e(f"s_mov_b32 s{SWO+3}, 0x20000")
    e(f"s_mov_b64 {sr(SOUT,2)}, s[48:49]"); e(f"s_mov_b32 s{SOUT+2}, {2048*1024*2}"); e(f"s_mov_b32 s{SOUT+3}, 0x20000")
    e(f"s_mov_b64 {sr(SWS,2)}, s[52:53]"); e(f"s_mov_b32 s{SWS+2}, {WS_SIZE}"); e(f"s_mov_b32 s{SWS+3}, 0x20000")
    e(f"s_lshl_b32 s{sT0}, s{sB}, 5")
    e(f"s_add_u32 s{sT0}, s{sT0}, s{sI}")
    e(f"s_lshl_b32 s{sT0}, s{sT0}, 2")
    e(f"s_load_dword s{sEP}, s[52:53], s{sT0}")
    e(f"s_add_u32 s{sT1}, s{sT0}, 4")
    e(f"s_load_dword s{sEP+1}, s[52:53], s{sT1}")
    e(f"s_add_u32 s{sT1}, s{sT0}, 8")
    e(f"s_load_dword s{sEP+2}, s[52:53], s{sT1}")
    if TOUCH:
        e(f"s_lshl_b32 s{sT0}, s{sB}, 3"); e(f"s_add_u32 s{sT0}, s{sT0}, s{sG}")
        e(f"s_lshl_b32 s{sT0}, s{sT0}, 4"); e(f"s_add_u32 s{sT0}, s{sT0}, s{sI}")
        e(f"s_lshl_b32 s{sT0}, s{sT0}, 15"); e(f"s_add_u32 s{sT0}, s{sT0}, {WS_KV}")
        e(f"s_load_dword s54, s[52:53], s{sT0}")
        e(f"s_lshl_b32 s{sT0}, s{sB}, 4"); e(f"s_add_u32 s{sT0}, s{sT0}, s{sI}")
        e(f"s_lshl_b32 s{sT0}, s{sT0}, 2"); e(f"s_add_u32 s{sT0}, s{sT0}, s{sTB}")
        e(f"s_lshl_b32 s{sT1}, s{sT0}, 15"); e(f"s_add_u32 s{sT1}, s{sT1}, {WS_O}")
        e(f"s_load_dword s54, s[52:53], s{sT1}")
        e(f"s_and_b32 s{sT0}, s{sT0}, 63"); e(f"s_lshl_b32 s{sT0}, s{sT0}, 16")
        e(f"s_load_dword s54, s[48:49], s{sT0}")
        e(f"s_lshl_b32 s{sT0}, s{sWv}, 16")
        e(f"s_load_dword s54, {sr(SWO,2)}, s{sT0}")
    e(f"v_and_b32 v{vT0}, 31, v0")
    e(f"v_lshrrev_b32 v{vT1}, 5, v0")
    e(f"v_bfe_u32 v{vT2}, v0, 1, 3")
    e(f"s_lshl_b32 s{sT2}, s{sTB}, 12")
    e(f"v_lshlrev_b32 v{vT3}, 7, v{vT0}")
    e(f"v_add_u32 v{vT3}, s{sT2}, v{vT3}")
    for s in range(4):
        e(f"v_add_u32 v{vT4}, {2*s}, v{vT1}")
        e(f"v_xor_b32 v{vT4}, v{vT4}, v{vT2}")
        e(f"v_lshl_add_u32 v{vXA+s}, v{vT4}, 4, v{vT3}")
    e(f"v_bfe_u32 v{vT0}, v0, 2, 2")
    e(f"v_lshl_add_u32 v{vT2}, v{vT1}, 3, v{vT0}")
    e(f"v_lshlrev_b32 v{vT2}, 7, v{vT2}")
    e(f"v_bfe_u32 v{vT3}, v0, 4, 1")
    e(f"v_lshlrev_b32 v{vT3}, 1, v{vT3}")
    e(f"v_bfe_u32 v{vT4}, v0, 1, 1")
    e(f"v_add_u32 v{vT3}, v{vT3}, v{vT4}")
    e(f"s_lshl_b32 s{sT2}, s{sHP}, 2")
    e(f"v_add_u32 v{vT3}, s{sT2}, v{vT3}")
    e(f"v_bfe_u32 v{vT4}, v0, 3, 1")
    e(f"v_lshlrev_b32 v{vT4}, 2, v{vT4}")
    e(f"v_xor_b32 v{vT3}, v{vT3}, v{vT4}")
    e(f"v_lshl_add_u32 v{vT2}, v{vT3}, 4, v{vT2}")
    e(f"v_and_b32 v{vT3}, 1, v0")
    e(f"v_lshl_add_u32 v{vWA}, v{vT3}, 3, v{vT2}")
    e(f"v_lshlrev_b32 v{vL16}, 4, v0")
    build_masks()
    e(f"s_mov_b32 s{sVMASK}, 0x0000ffff"); e(f"s_mov_b32 s{sVMASK+1}, 0x0000ffff")
    if EARLY:
        for c in range(1, PRE): pre_chunk(c)

LA = 2
def p1_reads(n):
    s = n % 4
    wb = WB + 8 * (n % 3)
    e(f"ds_read_b128 {vr(XF+4*n,4)}, v{vXA+s}")
    for j, base in enumerate((16384, 24576)):
        e(f"ds_read_b64_tr_b16 {vr(wb+4*j,2)}, v{vWA} offset:{base+s*2048}")
        e(f"ds_read_b64_tr_b16 {vr(wb+4*j+2,2)}, v{vWA} offset:{base+s*2048+512}")
def p1_boundary(c):
    vm = 4
    e(f"s_waitcnt vmcnt({vm})")
    e("s_barrier")
    if c in ((0,) if TSDMA else (0, 2, 4, 6)): ts()
    if c >= 1:
        d = SLOT[c % 5] - SLOT[(c-1) % 5]
        for s in range(4): e(f"v_add_u32 v{vXA+s}, {d & 0xffffffff}, v{vXA+s}")
        e(f"v_add_u32 v{vWA}, {d & 0xffffffff}, v{vWA}")
def p1_refill(n):
    if n < 2:
        dma_piece(SLOT[2], 2*n); dma_piece(SLOT[2], 2*n+1)
    elif n < 22:
        c = (n + 2) // 4 + 2
        dma_piece(SLOT[c % 5], (n + 2) % 4)
    elif n < 30:
        dma_wq_piece(n - 22)

def phase1():
    cm("---- pass A: K^T and V tiles ----")
    p1_boundary(0)
    for n in range(LA): p1_reads(n)
    for n in range(32):
        m = n + LA
        if m < 32:
            if m % 4 == 0: p1_boundary(m // 4)
            p1_reads(m)
            out = 5 * LA
        else:
            out = 5 * (31 - n)
        e(f"s_waitcnt lgkmcnt({out})")
        wb = WB + 8 * (n % 3)
        c0 = "0" if n == 0 else None
        e(f"{MF} {vr(ACCK,16)}, {vr(wb,4)}, {vr(XF+4*n,4)}, {c0 or vr(ACCK,16)}")
        e(f"{MF} {vr(ACCV,16)}, {vr(XF+4*n,4)}, {vr(wb+4,4)}, {c0 or vr(ACCV,16)}")
        p1_refill(n)
    e("s_waitcnt vmcnt(4)")
    e("s_barrier")
    ts()
    lcg(sTOK, sEP + 2)
    e(f"s_cmp_lt_u32 s{sWv}, 4")
    e(f"s_cselect_b32 s{sT0}, s{sEP}, s{sEP+1}")
    lcg(sTOKP, sT0)
    e(f"v_add_u32 v{vWA}, {SLOT[3]-SLOT[2]}, v{vWA}")
    LB = 4
    def rq(n):
        wb = WB + 4 * (n % 6)
        e(f"ds_read_b64_tr_b16 {vr(wb,2)}, v{vWA} offset:{n*2048}")
        e(f"ds_read_b64_tr_b16 {vr(wb+2,2)}, v{vWA} offset:{n*2048+512}")
    for n in range(LB): rq(n)
    cm("---- K/V epilogue: pack, publish, stage own block ----")
    e(f"s_lshl_b32 s{sT0}, s{sB}, 3"); e(f"s_add_u32 s{sT0}, s{sT0}, s{sG}")
    e(f"s_lshl_b32 s{sT0}, s{sT0}, 4"); e(f"s_add_u32 s{sT0}, s{sT0}, s{sI}")
    e(f"s_lshl_b32 s{sFO}, s{sT0}, 7")
    e(f"s_lshl_b32 s{sT1}, s{sTB}, 4"); e(f"s_add_u32 s{sFO}, s{sFO}, s{sT1}")
    e(f"s_lshl_b32 s{sT1}, s{sHP}, 3"); e(f"s_add_u32 s{sFO}, s{sFO}, s{sT1}")
    e(f"s_add_u32 s{sFO}, s{sFO}, {WS_KVFLAG}")
    e(f"s_lshl_b32 s{sKVO}, s{sT0}, 15")
    e(f"s_lshl_b32 s{sT1}, s{sTB}, 13"); e(f"s_add_u32 s{sKVO}, s{sKVO}, s{sT1}")
    e(f"s_lshl_b32 s{sT2}, s{sHP}, 11"); e(f"s_add_u32 s{sKVO}, s{sKVO}, s{sT2}")
    e(f"s_add_u32 s{sKVO}, s{sKVO}, {WS_KV}")
    e(f"v_and_b32 v{vT0}, 15, v0"); e(f"v_lshlrev_b32 v{vT0}, 4, v{vT0}")
    e(f"v_bfe_u32 v{vT1}, v0, 4, 1"); e(f"v_lshl_add_u32 v{vT0}, v{vT1}, 10, v{vT0}")
    e(f"v_lshrrev_b32 v{vT1}, 5, v0"); e(f"v_lshl_add_u32 v{vT0}, v{vT1}, 8, v{vT0}")
    e(f"v_add_u32 v{vT0}, 4096, v{vT0}")
    e(f"s_sub_u32 s{sT3}, 90112, s{sT1}"); e(f"s_add_u32 s{sT3}, s{sT3}, s{sT2}")
    e(f"v_add_u32 v{vT1}, s{sT3}, v{vL16}")
    e(f"v_add_u32 v{vT2}, s{sT3}, v{vT0}")
    for j in range(8): e(f"v_cvt_pk_bf16_f32 v{KD+j}, v{ACCK+2*j}, v{ACCK+2*j+1}")
    for j in range(8): e(f"v_cvt_pk_bf16_f32 v{ACCK+j}, v{ACCV+2*j}, v{ACCV+2*j+1}")
    e(f"buffer_store_dwordx4 {vr(KD,4)}, v{vL16}, {sr(SWS,4)}, s{sKVO} offen sc1")
    e(f"buffer_store_dwordx4 {vr(KD+4,4)}, v{vL16}, {sr(SWS,4)}, s{sKVO} offen offset:1024 sc1")
    e(f"buffer_store_dwordx4 {vr(ACCK,4)}, v{vT0}, {sr(SWS,4)}, s{sKVO} offen sc1")
    e(f"buffer_store_dwordx4 {vr(ACCK+4,4)}, v{vT0}, {sr(SWS,4)}, s{sKVO} offen offset:512 sc1")
    cm("---- pass B: Q^T tile ----")
    for n in range(32):
        m = n + LB
        if m == 16:
            ts()
            e("s_waitcnt vmcnt(0)")
            flag_store(sFO, sTOK)
            e("s_barrier")
            ts()
        if m < 32: rq(m)
        left = min(LB, 31 - n)
        extra = 4 if (n >= 1 and n <= LB) else 0
        cnt = 2 * left + (4 if n == 0 else 0) * 0
        if n >= 1 and n <= LB: cnt = 2 * left + 4 if n + LB > LB else cnt
        e(f"s_waitcnt lgkmcnt({min(cnt,15)})")
        wb = WB + 4 * (n % 6)
        e(f"{MF} {vr(ACCQ,16)}, {vr(wb,4)}, {vr(XF+4*n,4)}, {'0' if n == 0 else vr(ACCQ,16)}")
        if n == 0:
            e(f"ds_write_b128 v{vT1}, {vr(KD,4)}")
            e(f"ds_write_b128 v{vT1}, {vr(KD+4,4)} offset:1024")
            e(f"ds_write_b128 v{vT2}, {vr(ACCK,4)}")
            e(f"ds_write_b128 v{vT2}, {vr(ACCK+4,4)} offset:512")
    ts()

def handoff_kv():
    cm("---- fetch the K/V blocks of the two previous row blocks ----")
    e(f"s_add_u32 s{sT0}, s{sI}, s{sHP}")
    e(f"s_cmp_lt_u32 s{sT0}, 2")
    e("s_cselect_b32 s%d, 1, 0" % sDONE)
    e("s_cbranch_scc1 L_nokv")
    e(f"s_sub_u32 s{sT0}, s{sT0}, 2")
    e(f"s_lshl_b32 s{sT1}, s{sB}, 3"); e(f"s_add_u32 s{sT1}, s{sT1}, s{sG}")
    e(f"s_lshl_b32 s{sT1}, s{sT1}, 4"); e(f"s_add_u32 s{sT0}, s{sT0}, s{sT1}")
    e(f"s_and_b32 s{sT1}, s{sWv}, 3")
    e(f"s_lshl_b32 s{sFO}, s{sT0}, 7"); e(f"s_lshl_b32 s{sT2}, s{sT1}, 4")
    e(f"s_add_u32 s{sFO}, s{sFO}, s{sT2}"); e(f"s_add_u32 s{sFO}, s{sFO}, {WS_KVFLAG}")
    e(f"s_lshl_b32 s{sKVO}, s{sT0}, 15"); e(f"s_lshl_b32 s{sT2}, s{sT1}, 13")
    e(f"s_add_u32 s{sKVO}, s{sKVO}, s{sT2}"); e(f"s_add_u32 s{sKVO}, s{sKVO}, {WS_KV}")
    e(f"v_mov_b32 v{vT0}, 0")
    poll("L_pkv", vT0, sFO, sTOKP, 4)
    e(f"s_add_u32 s{sT0}, s{sKVO}, 4096")
    for j in range(8):
        e(f"buffer_load_dwordx4 {vr(STG+4*j,4)}, v{vL16}, {sr(SWS,4)}, s{sKVO if j < 4 else sT0} offen offset:{(j%4)*1024} sc1")
    lab("L_nokv")
    ts()
    cm("Q: scale by log2(e)/4, pack")
    e(f"s_mov_b32 s{sT0}, 0x3eb8aa3b")
    for j in range(16): e(f"v_mul_f32 v{ACCQ+j}, s{sT0}, v{ACCQ+j}")
    for j in range(8): e(f"v_cvt_pk_bf16_f32 v{QF+j}, v{ACCQ+2*j}, v{ACCQ+2*j+1}")
    for j in range(16): e(f"v_mov_b32 v{CP+j}, 0")
    for j in range(16): e(f"v_mov_b32 v{VF[0]+j}, 0x3f803f80")
    e(f"s_lshl_b32 s{sT0}, s{sTB}, 13"); e(f"s_sub_u32 s{sT0}, {90112+8192}, s{sT0}")
    e(f"s_lshl_b32 s{sT1}, s{sHP}, 11"); e(f"s_add_u32 s{sT0}, s{sT0}, s{sT1}")
    e(f"v_add_u32 v{vKA}, s{sT0}, v{vL16}")
    e(f"v_and_b32 v{vT0}, 15, v0"); e(f"v_lshlrev_b32 v{vT0}, 4, v{vT0}")
    e(f"v_lshrrev_b32 v{vT1}, 5, v0"); e(f"v_lshl_add_u32 v{vT0}, v{vT1}, 8, v{vT0}")
    e(f"s_sub_u32 s{sT0}, s{sT0}, 4096")
    e(f"v_add_u32 v{vVA}, s{sT0}, v{vT0}")
    e(f"v_add_u32 v{vVA2}, 0x10000, v{vVA}")
    e(f"s_lshl_b32 s{sT0}, s{sI}, 2"); e(f"s_add_u32 s{sT0}, s{sT0}, s{sTB}")
    e(f"s_min_u32 s{sLAST}, s{sT0}, 8")
    e(f"s_lshl_b32 s{sT1}, s{sB}, 6"); e(f"s_add_u32 s{sT0}, s{sT0}, s{sT1}")
    e(f"s_lshl_b32 s{sOLD}, s{sT0}, 15"); e(f"s_lshl_b32 s{sT1}, s{sHP}, 11")
    e(f"s_add_u32 s{sOLD}, s{sOLD}, s{sT1}"); e(f"s_add_u32 s{sOLD}, s{sOLD}, {WS_O}")
    e(f"s_lshl_b32 s{sT1}, s{sG}, 12"); e(f"s_add_u32 s{sOST}, s{sOLD}, s{sT1}")
    e(f"s_lshl_b32 s{sFO}, s{sT0}, 9"); e(f"s_lshl_b32 s{sT1}, s{sHP}, 8")
    e(f"s_add_u32 s{sFO}, s{sFO}, s{sT1}"); e(f"s_add_u32 s{sFO}, s{sFO}, {WS_OFLAG}")
    e(f"v_and_b32 v{vFLG}, 7, v0"); e(f"v_lshlrev_b32 v{vFLG}, 3, v{vFLG}")
    e("s_waitcnt lgkmcnt(0)")
    e("s_barrier")
    e(f"s_cmp_eq_u32 s{sDONE}, 1")
    e("s_cbranch_scc1 L_nokv2")
    e(f"s_lshl_b32 s{sT0}, s{sWv}, 13"); e(f"s_sub_u32 s{sT0}, 155648, s{sT0}")
    e(f"v_add_u32 v{vT0}, s{sT0}, v{vL16}")
    for j in range(8):
        e(f"s_waitcnt vmcnt({7-j})")
        e(f"ds_write_b128 v{vT0}, {vr(STG+4*j,4)} offset:{j*1024}")
    lab("L_nokv2")
    if WOLATE == 1: dma_wo_rot()
    e("s_waitcnt lgkmcnt(0)")
    e("s_barrier")
    ts()
    if WOLATE == 2: dma_wo_rot()

def rdK(d):
    e(f"ds_read_b128 {vr(KF[d%2],4)}, v{vKA} offset:{(d-1)*8192}")
def rdV(d):
    a, off = (vVA, d*8192) if d < 8 else (vVA2, 0)
    e(f"s_mov_b64 exec, {sr(sVMASK,2)}")
    e(f"ds_read_b128 {vr(VF[d%2],4)}, v{a} offset:{off}")
    e(f"ds_read_b128 {vr(VF[d%2]+4,4)}, v{a} offset:{off+512}")
    e("s_mov_b64 exec, -1")
def ctup(d): return CD if d == 0 else (CF if d == 8 else CP)

def attention(hh):
    q = QF + 4*hh; kd = KD + 4*hh
    cm(f"---- attention, head {hh} of the wave's pair ----")
    e(f"s_mov_b32 s{sFB}, 0")
    lab(f"L_att{hh}")
    rdK(1); rdV(0)
    e(f"{MF} {vr(S[0],16)}, {vr(kd,4)}, {vr(q,4)}, {vr(CD,16)}")
    for k in range(9):
        s = S[k%2]; p = P[k%2]; pp = P[(k-1)%2]; vp = VF[(k-1)%2]
        e("s_waitcnt lgkmcnt(2)")
        if k < 8:
            e(f"{MF} {vr(S[(k+1)%2],16)}, {vr(KF[(k+1)%2],4)}, {vr(q,4)}, {vr(ctup(k+1),16)}")
        if k == 0: e("s_nop 9")
        for r in range(6): e(f"v_exp_f32 v{s+r}, v{s+r}")
        if k >= 1: e(f"{MF} {vr(OA,16)}, {vr(vp,4)}, {vr(pp,4)}, {'0' if k == 1 else vr(OA,16)}")
        for r in range(6, 12): e(f"v_exp_f32 v{s+r}, v{s+r}")
        if k >= 1: e(f"{MF} {vr(OA,16)}, {vr(vp+4,4)}, {vr(pp+4,4)}, {vr(OA,16)}")
        if k < 7: rdK(k+2)
        if k < 8:
            rdV(k+1)
        for r in range(12, 16): e(f"v_exp_f32 v{s+r}, v{s+r}")
        for j in range(8): e(f"v_cvt_pk_bf16_f32 v{p+j}, v{s+2*j}, v{s+2*j+1}")
        if hh == 1 and k == 4:
            e("s_waitcnt vmcnt(0)")
            flag_store(sOWNF, sTOK)
            e(f"s_mov_b32 s{sDONE}, 1")
        if k < 8:
            e(f"s_cmp_eq_u32 s{sLAST}, {k}")
            e(f"s_cbranch_scc1 L_x{hh}_{k}")
    def tail(k):
        e("s_waitcnt lgkmcnt(0)")
        e("s_nop 0")
        e(f"{MF} {vr(OA,16)}, {vr(VF[k%2],4)}, {vr(P[k%2],4)}, {'0' if k == 0 else vr(OA,16)}")
        e(f"{MF} {vr(OA,16)}, {vr(VF[k%2]+4,4)}, {vr(P[k%2]+4,4)}, {vr(OA,16)}")
    tail(8)
    lab(f"L_fin{hh}")
    e("s_nop 11")
    e(f"v_mov_b32 v{vT0}, v{OA+8}")
    e(f"v_rcp_f32 v{vT1}, v{OA+8}")
    for r in range(8): e(f"v_fma_f32 v{vT0}, v{OA+r}, 0, v{vT0}")
    e(f"s_mov_b32 s{sT0}, 0x71800000")
    e(f"s_mov_b32 s{sT1}, 0x0d800000")
    e(f"v_cmp_nlt_f32 vcc, v{vT0}, s{sT0}" if False else f"v_cmp_ngt_f32 vcc, s{sT0}, v{vT0}")
    e(f"v_cmp_nlt_f32 {sr(sT2,2)}, s{sT1}, v{vT0}")
    for r in range(8): e(f"v_mul_f32 v{OA+r}, v{OA+r}, v{vT1}")
    e(f"s_or_b64 vcc, vcc, {sr(sT2,2)}")
    e(f"s_cbranch_scc1 L_fb{hh}")
    lab(f"L_ok{hh}")
    for j in range(4): e(f"v_cvt_pk_bf16_f32 v{OA+j}, v{OA+2*j}, v{OA+2*j+1}")
    e(f"buffer_store_dwordx4 {vr(OA,4)}, v{vL16}, {sr(SWS,4)}, s{sOST} offen offset:{hh*1024} sc1")
    def stubs():
        for k in range(8):
            lab(f"L_x{hh}_{k}")
            tail(k)
            e(f"s_branch L_fin{hh}")
        lab(f"L_fb{hh}")
        e(f"s_cmp_eq_u32 s{sFB}, 1")
        e(f"s_cbranch_scc1 L_fbdone{hh}")
        e(f"s_mov_b32 s{sFB}, 1")
        e(f"{MF} {vr(S[0],16)}, {vr(kd,4)}, {vr(q,4)}, {vr(CD,16)}")
        e(f"v_mov_b32 v{vT0}, 0xff7fffff")
        e(f"v_mov_b32 v{vT2}, v{vKA}")
        e(f"s_mov_b32 s{sCNT}, 0")
        lab(f"L_fbl{hh}")
        e("s_nop 15")
        for j in range(8): e(f"v_max3_f32 v{vT0}, v{S[0]+2*j}, v{S[0]+2*j+1}, v{vT0}")
        e(f"s_cmp_eq_u32 s{sCNT}, s{sLAST}")
        e(f"s_cbranch_scc1 L_fbm{hh}")
        e(f"s_add_u32 s{sCNT}, s{sCNT}, 1")
        e(f"ds_read_b128 {vr(KF[0],4)}, v{vT2}")
        e(f"v_add_u32 v{vT2}, 8192, v{vT2}")
        e("s_waitcnt lgkmcnt(0)")
        e(f"s_cmp_eq_u32 s{sCNT}, 8")
        e(f"s_cbranch_scc1 L_fbf{hh}")
        e(f"{MF} {vr(S[0],16)}, {vr(KF[0],4)}, {vr(q,4)}, 0")
        e(f"s_branch L_fbl{hh}")
        lab(f"L_fbf{hh}")
        e(f"{MF} {vr(S[0],16)}, {vr(KF[0],4)}, {vr(q,4)}, {vr(CF,16)}")
        e(f"s_branch L_fbl{hh}")
        lab(f"L_fbm{hh}")
        e(f"v_mov_b32 v{vT1}, v{vT0}")
        e("s_nop 1")
        e(f"v_permlane32_swap_b32 v{vT0}, v{vT1}")
        e("s_nop 1")
        e(f"v_max_f32 v{vT0}, v{vT0}, v{vT1}")
        for j in range(16):
            e(f"v_sub_f32 v{CD+j}, v{CD+j}, v{vT0}")
            e(f"v_sub_f32 v{CF+j}, v{CF+j}, v{vT0}")
            e(f"v_sub_f32 v{CP+j}, 0, v{vT0}")
        e("s_nop 1")
        e(f"s_branch L_att{hh}")
        lab(f"L_fbdone{hh}")
        e(f"s_branch L_ok{hh}")
    return stubs

def restore_c(tag):
    e(f"s_cmp_eq_u32 s{sFB}, 0")
    e(f"s_cbranch_scc1 {tag}")
    build_masks()
    for j in range(16): e(f"v_mov_b32 v{CP+j}, 0")
    lab(tag)

def outproj(st):
    cm(f"---- out-projection stage {st} ----")
    e(f"s_add_u32 s{sT0}, s{sOLD}, {st*1024}")
    for gq in range(8):
        e(f"buffer_load_dwordx4 {vr(OIN[gq],4)}, v{vL16}, {sr(SWS,4)}, s{sT0} offen sc1")
        if gq < 7: e(f"s_add_u32 s{sT0}, s{sT0}, 4096")
    def rw(gq):
        f = WOF[gq % 2]
        for ct, a in enumerate((vWOA0, vWOA1)):
            e(f"ds_read_b64_tr_b16 {vr(f+4*ct,2)}, v{a} offset:{gq*8192+st*2048}")
            e(f"ds_read_b64_tr_b16 {vr(f+4*ct+2,2)}, v{a} offset:{gq*8192+st*2048+1024}")
    rw(0)
    for gq in range(8):
        if gq < 7: rw(gq+1)
        e(f"s_waitcnt vmcnt({7-gq}) lgkmcnt({4 if gq < 7 else 0})")
        f = WOF[gq % 2]
        for ct in range(2):
            c = "0" if (st == 0 and gq == 0) else vr(OUTA[ct],16)
            e(f"{MF} {vr(OUTA[ct],16)}, {vr(f+4*ct,4)}, {vr(OIN[gq],4)}, {c}")

def phase23():
    e(f"s_mov_b32 s{sDONE}, 0")
    e(f"s_lshl_b32 s{sOWNF}, s{sG}, 3"); e(f"s_add_u32 s{sOWNF}, s{sOWNF}, s{sFO}")
    st0 = attention(0)
    ts()
    restore_c("L_rc0")
    e(f"v_add_u32 v{vKA}, 1024, v{vKA}"); e(f"v_add_u32 v{vVA}, 1024, v{vVA}"); e(f"v_add_u32 v{vVA2}, 1024, v{vVA2}")
    st1 = attention(1)
    ts()
    e(f"v_bfe_u32 v{vT0}, v0, 2, 2")
    e(f"v_lshrrev_b32 v{vT1}, 5, v0")
    e(f"v_lshl_add_u32 v{vT0}, v{vT1}, 2, v{vT0}")
    e(f"v_lshlrev_b32 v{vT0}, 7, v{vT0}")
    e(f"s_lshl_b32 s{sT0}, s{sHP}, 12")
    e(f"v_add_u32 v{vT0}, s{sT0}, v{vT0}")
    e(f"v_bfe_u32 v{vT1}, v0, 1, 1"); e(f"v_lshl_add_u32 v{vT0}, v{vT1}, 3, v{vT0}")
    e(f"v_and_b32 v{vT1}, 1, v0"); e(f"v_lshlrev_b32 v{vT1}, 1, v{vT1}")
    e(f"v_bfe_u32 v{vT2}, v0, 4, 1"); e(f"v_add_u32 v{vT1}, v{vT1}, v{vT2}")
    e(f"v_bfe_u32 v{vT2}, v0, 3, 1"); e(f"v_lshlrev_b32 v{vT2}, 2, v{vT2}")
    e(f"v_xor_b32 v{vT1}, v{vT1}, v{vT2}")
    e(f"v_lshl_add_u32 v{vWOA0}, v{vT1}, 4, v{vT0}")
    e(f"v_xor_b32 v{vWOA1}, 64, v{vWOA0}")
    e(f"s_cmp_eq_u32 s{sDONE}, 1")
    e("s_cbranch_scc1 L_f0done")
    e("s_waitcnt vmcnt(1)")
    flag_store(sOWNF, sTOK)
    lab("L_f0done")
    e("s_barrier")
    poll("L_po0", vFLG, sFO, sTOK, 2)
    e(f"s_add_u32 s{sOWNF}, s{sOWNF}, 128")
    flag_store(sOWNF, sTOK)
    ts()
    e(f"s_or_b32 s{sT0}, s{sG}, s{sWv}")
    e(f"s_cmp_lg_u32 s{sT0}, 0")
    e("s_cbranch_scc1 L_noep")
    e(f"s_lshl_b32 s{sT0}, s{sB}, 5"); e(f"s_add_u32 s{sT0}, s{sT0}, s{sI}"); e(f"s_lshl_b32 s{sT0}, s{sT0}, 2")
    e(f"s_cmp_eq_u32 s{sI}, 15")
    e(f"s_cselect_b32 s{sT1}, 7, 1")
    e(f"v_mov_b32 v{vT0}, s{sEP}")
    e(f"v_writelane_b32 v{vT0}, s{sEP+1}, 1")
    e(f"v_writelane_b32 v{vT0}, s{sEP+2}, 2")
    e(f"s_mov_b32 s{sT2}, 1664525")
    e(f"v_mul_lo_u32 v{vT0}, v{vT0}, s{sT2}")
    e(f"v_add_u32 v{vT0}, 1013904223, v{vT0}")
    e(f"v_lshlrev_b32 v{vT1}, 2, v0")
    e(f"s_mov_b32 exec_lo, s{sT1}"); e("s_mov_b32 exec_hi, 0")
    e(f"buffer_store_dword v{vT0}, v{vT1}, {sr(SWS,4)}, s{sT0} offen")
    e("s_mov_b64 exec, -1")
    e("s_waitcnt vmcnt(0)")
    lab("L_noep")
    e("s_waitcnt vmcnt(0)")
    outproj(0)
    e(f"s_add_u32 s{sFO}, s{sFO}, 128")
    poll("L_po1", vFLG, sFO, sTOK, 2)
    ts()
    outproj(1)
    cm("---- pairwise reduction over the two head-pair waves, pack, store ----")
    e(f"s_lshl_b32 s{sT0}, s{sWv}, 12"); e(f"s_add_u32 s{sT0}, s{sT0}, 65536")
    e(f"v_add_u32 v{vT0}, s{sT0}, v{vL16}")
    e(f"s_sub_u32 s{sT1}, 7, s{sWv}")
    e(f"s_lshl_b32 s{sT1}, s{sT1}, 12"); e(f"s_add_u32 s{sT1}, s{sT1}, 65536")
    e(f"v_add_u32 v{vT1}, s{sT1}, v{vL16}")
    e(f"s_lshl_b32 s{sT0}, s{sI}, 2"); e(f"s_add_u32 s{sT0}, s{sT0}, s{sTB}"); e(f"s_lshl_b32 s{sT0}, s{sT0}, 16")
    e(f"s_lshl_b32 s{sT1}, s{sB}, 10"); e(f"s_add_u32 s{sT0}, s{sT0}, s{sT1}")
    e(f"s_lshl_b32 s{sT1}, s{sG}, 7"); e(f"s_add_u32 s{sT0}, s{sT0}, s{sT1}")
    e(f"s_lshl_b32 s{sT1}, s{sHP}, 6"); e(f"s_add_u32 s{sT0}, s{sT0}, s{sT1}")
    e(f"v_and_b32 v{vT2}, 31, v0"); e(f"v_lshlrev_b32 v{vT2}, 11, v{vT2}")
    e(f"v_lshrrev_b32 v{vT3}, 5, v0"); e(f"v_lshl_add_u32 v{vT2}, v{vT3}, 5, v{vT2}")
    e(f"s_cmp_eq_u32 s{sHP}, 0")
    e("s_cbranch_scc1 L_red0")
    for keep in (1, 0):
        if keep == 0: lab("L_red0")
        give = OUTA[1-keep]; mine = OUTA[keep]
        e("s_nop 3")
        for j in range(4): e(f"ds_write_b128 v{vT0}, {vr(give+4*j,4)} offset:{j*1024}")
        e("s_waitcnt lgkmcnt(0)")
        e("s_barrier")
        for j in range(4): e(f"ds_read_b128 {vr(S[0]+4*j,4)}, v{vT1} offset:{j*1024}")
        for j in range(4):
            e(f"s_waitcnt lgkmcnt({3-j})")
            for r in range(4): e(f"v_add_f32 v{mine+4*j+r}, v{mine+4*j+r}, v{S[0]+4*j+r}")
        for j in range(8): e(f"v_cvt_pk_bf16_f32 v{mine+j}, v{mine+2*j}, v{mine+2*j+1}")
        e(f"buffer_store_dwordx4 {vr(mine,4)}, v{vT2}, {sr(SOUT,4)}, s{sT0} offen")
        e(f"buffer_store_dwordx4 {vr(mine+4,4)}, v{vT2}, {sr(SOUT,4)}, s{sT0} offen offset:16")
        if keep == 1: e("s_branch L_stored")
    lab("L_stored")
    if DIAG:
        e("s_waitcnt vmcnt(0)")
        ts()
        e(f"s_memrealtime {sr(sT2,2)}"); e("s_waitcnt lgkmcnt(0)"); e(f"s_mov_b32 s{sTS+21}, s{sT2}")
        for n in list(range(tsn[0])) + [20, 21]:
            e(f"v_writelane_b32 v{vT0}, s{sTS+n}, {n}")
        e(f"s_lshl_b32 s{sT0}, s2, 3"); e(f"s_add_u32 s{sT0}, s{sT0}, s{sWv}"); e(f"s_lshl_b32 s{sT0}, s{sT0}, 7")
        e(f"s_add_u32 s{sT0}, s{sT0}, {WS_DIAG}")
        e(f"v_lshlrev_b32 v{vT1}, 2, v0")
        e("s_mov_b32 exec_lo, -1"); e("s_mov_b32 exec_hi, 0")
        e(f"buffer_store_dword v{vT0}, v{vT1}, {sr(SWS,4)}, s{sT0} offen")
    lab("L_end")
    e("s_endpgm")
    st0(); st1()
    lab("L_last")
    e("s_endpgm")

hdr = open("cdna_kernels/%s.s.ref" % NAME).read().split("\n")
out = [l for l in hdr if l.startswith(";") and "@launch" not in l and "Override" not in l and "grid=ceil" not in l]
out.append("; @launch grid=(256,1,1) block=(512,1,1) lds=163840")
out += ['.amdgcn_target "amdgcn-amd-amdhsa--gfx950"', ".text", f".globl {NAME}_kernel", ".p2align 8",
        f".type {NAME}_kernel,@function", f"{NAME}_kernel:"]
prologue(); phase1(); handoff_kv(); phase23()
out += L
out += ['.section .rodata,"a"', ".p2align 6", f".amdhsa_kernel {NAME}_kernel",
        "  .amdhsa_next_free_vgpr 256", "  .amdhsa_next_free_sgpr 102", "  .amdhsa_accum_offset 256",
        "  .amdhsa_group_segment_fixed_size 0", "  .amdhsa_kernarg_size 72", "  .amdhsa_user_sgpr_count 2",
        "  .amdhsa_user_sgpr_kernarg_segment_ptr 1", "  .amdhsa_system_sgpr_workgroup_id_x 1", ".end_amdhsa_kernel"]
print("\n".join(out))
```

```python
import sys
DIAG = "--diag" in sys.argv
def opt(name, dflt):
    for a in sys.argv[1:]:
        if a.startswith("--" + name + "="): return a.split("=", 1)[1]
    return dflt
ROT = opt("rot", "i2g")
PRE = 2
NT = int(opt("nt", "2"))
NAME = "concat_heads__sliding_block__sliding_block__prompt"
L = []
def e(s=""): L.append("    " + s)
def lab(s): L.append(s + ":")
def cm(s): L.append("    ; " + s)
def vr(a, n=1): return f"v{a}" if n == 1 else f"v[{a}:{a+n-1}]"
def sr(a, n=1): return f"s{a}" if n == 1 else f"s[{a}:{a+n-1}]"

WS_EPOCH = 0x0
WS_KVFLAG = 0x1000
WS_OFLAG = 0x10000
WS_KV = 0x200000
WS_O = 0x1000000
WS_DIAG = 0x1800000
WS_SIZE = 0x2000000
SX, SW, SWO, SOUT, SWS = 4, 8, 12, 16, 20
sB, sI, sG, sWv, sTB, sHP = 24, 25, 26, 27, 28, 29
sTOK, sTOKP = 30, 32
sXO, sWKO, sWVO, sWQO, sWOO = 34, 35, 54, 55, 56
sM2K, sM1K = 57, 58
sLAST, sFB, sCNT, sT0, sT1, sT2, sT3 = 59, 60, 61, 62, 63, 64, 65
sEP = 68
sVMASK = 72
sKVO, sOST, sOLD, sFO = 74, 75, 76, 77
sDONE = 78
sOWNF = 79
sTM = 66
sC = 3
sTS = 80
vX0, vX1, vW, vWO = 1, 2, 3, 4
vXA = 5
vWA = 9
vL16 = 10
vT0, vT1, vT2, vT3, vT4 = 11, 12, 13, 14, 15
ACCK, ACCV, ACCQ = 16, 32, 48
WB = 64
CD, CF = 88, 104
KD = 120
XF = 128
QF = 64
CP = 128; S = [144, 160]; P = [176, 184]; KF = [192, 196]; VF = [200, 208]; OA = 216
OUTA = [16, 32]
OIN = [48, 52, 56, 60, 72, 76, 80, 84]
WOF = [232, 240]
vKA, vVA, vVA2, vWOA0, vWOA1, vFLG = 248, 249, 250, 251, 252, 253
vVW = 254
STG = 16

SLOT = [0, 32768, 65536, 98304, 131072]
tsn = [0]
ndma = [0]
TSDMA = "--tsdma" in sys.argv
FLAGSTEP = int(opt("fs", "31"))
EARLY = int(opt("early", "1"))
TOUCH = int(opt("touch", "1"))
CPF = int(opt("cpf", "1"))
WOLATE = int(opt("wolate", "2"))
def ts():
    if DIAG:
        n = tsn[0]; tsn[0] += 1
        e(f"s_memtime {sr(sTM,2)}"); e("s_waitcnt lgkmcnt(0)"); e(f"s_mov_b32 s{sTS+n}, s{sTM}")

def dma(srd, voff, soff, ldsbase_s, ldsimm, pol=""):
    e(f"s_add_u32 m0, s{ldsbase_s}, {ldsimm}")
    e("s_nop 0")
    e(f"buffer_load_dwordx4 v{voff}, {sr(srd,4)}, s{soff} offen {pol}lds")
    ndma[0] += 1
    if TSDMA and ndma[0] in (1, 2, 3, 4, 6, 8): ts()

def next_c():
    e(f"s_add_u32 s{sC}, s{sC}, 1")
    e(f"s_and_b32 s{sC}, s{sC}, 7")
sCX, sCW = 98, 99
def dma_piece(slot, j, px="", pw=""):
    if j == 0:
        e(f"s_lshl_b32 s{sCX}, s{sC}, 7")
        e(f"s_mul_i32 s{sCW}, s{sC}, {64*3072}")
        e(f"s_add_u32 s{sCX}, s{sCX}, s{sXO}")
        e(f"s_add_u32 s{sCW}, s{sCW}, s{sWKO}")
        dma(SX, vX0, sCX, sM2K, slot, px)
    elif j == 1: dma(SX, vX1, sCX, sM2K, slot + 1024, px)
    elif j == 2: dma(SW, vW, sCW, sM1K, slot + 16384, pw)
    else:
        e(f"s_add_u32 s{sCW}, s{sCW}, 1024")
        dma(SW, vW, sCW, sM1K, slot + 24576, pw)
        next_c()
def dma_chunk(slot, px="", pw=""):
    for j in range(4): dma_piece(slot, j, px, pw)
def dma_wq_piece(q):
    e(f"s_mul_i32 s{sCW}, s{sC}, {64*3072}")
    e(f"s_add_u32 s{sCW}, s{sCW}, s{sWQO}")
    dma(SW, vW, sCW, sM1K, SLOT[3] + q*8192)
    next_c()
def dma_wo_rot(cnt=8):
    for q in range(cnt):
        e(f"s_lshl_b32 s{sT0}, s{sC}, 13")
        e(f"s_lshl_b32 s{sT1}, s{sC}, 16")
        e(f"s_add_u32 s{sT0}, s{sT0}, s{sM1K}")
        e(f"s_add_u32 s{sT1}, s{sT1}, s{sWOO}")
        dma(SWO, vWO, sT1, sT0, 0)
        next_c()
def dma_wo(half):
    if WOLATE: return
    for q in range(4):
        dma(SWO, vWO, sWOO, sM1K, (half*4+q)*8192)
        e(f"s_add_u32 s{sWOO}, s{sWOO}, {64*1024}")

def lcg(dst, src):
    e(f"s_mul_i32 s{dst}, s{src}, 1664525")
    e(f"s_add_u32 s{dst}, s{dst}, 1013904223")
    e(f"s_xor_b32 s{dst+1}, s{dst}, 0x9e3779b9")

def build_masks():
    e(f"v_and_b32 v{vT0}, 31, v0")
    e(f"v_bfe_u32 v{vT1}, v0, 5, 1")
    e(f"v_lshlrev_b32 v{vT1}, 2, v{vT1}")
    e(f"v_sub_u32 v{vT0}, v{vT0}, v{vT1}")
    e(f"v_mov_b32 v{vT1}, 0xf149f2ca")
    e(f"v_mov_b32 v{vT2}, 0")
    for r in range(16):
        kk = 8*(r//4) + r % 4
        e(f"v_cmp_le_i32 vcc, {kk}, v{vT0}")
        e("s_nop 1")
        e(f"v_cndmask_b32 v{CD+r}, v{vT1}, v{vT2}, vcc")
        e(f"v_cndmask_b32 v{CF+r}, v{vT2}, v{vT1}, vcc")

def poll(name, voff, soff, tok, nwords):
    e(f"s_mov_b32 s{sCNT}, 0")
    lab(name)
    e(f"buffer_load_dwordx{nwords} {vr(vT0 + 1, nwords)}, v{voff}, {sr(SWS,4)}, s{soff} offen sc1")
    e(f"s_add_u32 s{sCNT}, s{sCNT}, 1")
    e("s_waitcnt vmcnt(0)")
    e(f"v_xor_b32 v{vT0+1}, s{tok}, v{vT0+1}")
    e(f"v_xor_b32 v{vT0+2}, s{tok+1}, v{vT0+2}")
    if nwords == 4:
        e(f"v_xor_b32 v{vT0+3}, s{tok}, v{vT0+3}")
        e(f"v_xor_b32 v{vT0+4}, s{tok+1}, v{vT0+4}")
        e(f"v_or3_b32 v{vT0+1}, v{vT0+1}, v{vT0+3}, v{vT0+4}")
    e(f"v_or_b32 v{vT0+1}, v{vT0+1}, v{vT0+2}")
    e(f"v_cmp_ne_u32 vcc, 0, v{vT0+1}")
    e(f"s_cbranch_vccz {name}_ok")
    e(f"s_cmp_lt_u32 s{sCNT}, 0x400000")
    e(f"s_cbranch_scc1 {name}")
    lab(name + "_ok")

def flag_store(soff, tok):
    e(f"v_mov_b32 v{vT0+1}, s{tok}")
    e(f"v_mov_b32 v{vT0+2}, s{tok+1}")
    e(f"v_mov_b32 v{vT0}, 0")
    e("s_mov_b64 exec, 1")
    e(f"buffer_store_dwordx2 {vr(vT0+1,2)}, v{vT0}, {sr(SWS,4)}, s{soff} offen sc1")
    e("s_mov_b64 exec, -1")

MF = "v_mfma_f32_32x32x16_bf16"

def prologue():
    e("s_cmp_ge_u32 s2, 256")
    e("s_cbranch_scc1 L_end")
    e("s_load_dwordx16 s[36:51], s[0:1], 0")
    e("s_load_dwordx2 s[52:53], s[0:1], 64")
    if DIAG:
        e(f"s_memrealtime {sr(sT2,2)}"); e("s_waitcnt lgkmcnt(0)"); e(f"s_mov_b32 s{sTS+20}, s{sT2}")
    ts()
    e(f"v_lshrrev_b32 v{vT0}, 6, v0")
    if CPF:
        e(f"s_getpc_b64 {sr(sT2,2)}")
        lab("L_pc")
        e(f"v_lshlrev_b32 v{vT1}, 6, v0")
        e(f"v_min_u32 v{vT1}, L_last-L_pc, v{vT1}")
        e(f"global_load_dword v255, v{vT1}, {sr(sT2,2)}")
    e(f"s_and_b32 s{sT0}, s2, 7")
    e(f"v_readfirstlane_b32 s{sWv}, v{vT0}")
    e(f"s_lshr_b32 s{sT1}, s2, 3")
    e(f"s_lshr_b32 s{sB}, s{sT0}, 2")
    e(f"s_bfe_u32 s{sI}, s{sT0}, 0x10001")
    e(f"s_lshl_b32 s{sI}, s{sI}, 3")
    e(f"s_lshr_b32 s{sT2}, s{sT1}, 2")
    e(f"s_add_u32 s{sI}, s{sI}, s{sT2}")
    e(f"s_and_b32 s{sG}, s{sT0}, 1")
    e(f"s_lshl_b32 s{sG}, s{sG}, 2")
    e(f"s_and_b32 s{sT2}, s{sT1}, 3")
    e(f"s_add_u32 s{sG}, s{sG}, s{sT2}")
    e("v_and_b32 v0, 63, v0")
    e(f"s_lshr_b32 s{sHP}, s{sWv}, 2")
    e(f"s_sub_u32 s{sT2}, 7, s{sWv}")
    e(f"s_cmp_lt_u32 s{sWv}, 4")
    e(f"s_cselect_b32 s{sTB}, s{sWv}, s{sT2}")
    e(f"s_lshl_b32 s{sM2K}, s{sWv}, 11")
    e(f"s_lshl_b32 s{sM1K}, s{sWv}, 10")
    e(f"v_lshrrev_b32 v{vT0}, 3, v0")
    e(f"v_and_b32 v{vT1}, 7, v0")
    e(f"v_lshrrev_b32 v{vT2}, 4, v0")
    e(f"v_xor_b32 v{vT3}, v{vT1}, v{vT2}")
    e(f"s_lshl_b32 s{sT2}, s{sWv}, 4")
    e(f"v_add_u32 v{vT4}, s{sT2}, v{vT0}")
    e(f"v_lshlrev_b32 v{vT4}, 10, v{vT4}")
    e(f"v_lshl_add_u32 v{vX0}, v{vT3}, 4, v{vT4}")
    e(f"v_xor_b32 v{vT3}, 4, v{vT3}")
    e(f"v_lshl_add_u32 v{vX1}, v{vT3}, 4, v{vT4}")
    e(f"v_add_u32 v{vX1}, 8192, v{vX1}")
    e(f"v_and_b32 v{vT2}, 1, v{vT2}")
    e(f"v_lshlrev_b32 v{vT2}, 2, v{vT2}")
    e(f"v_xor_b32 v{vT1}, v{vT1}, v{vT2}")
    e(f"s_lshl_b32 s{sT2}, s{sWv}, 3")
    e(f"v_add_u32 v{vT0}, s{sT2}, v{vT0}")
    e(f"v_mul_u32_u24 v{vT4}, 3072, v{vT0}")
    e(f"v_lshl_add_u32 v{vW}, v{vT1}, 4, v{vT4}")
    e(f"v_lshlrev_b32 v{vT4}, 10, v{vT0}")
    e(f"v_lshl_add_u32 v{vWO}, v{vT1}, 4, v{vT4}")
    e(f"s_lshl_b32 s{sXO}, s{sI}, 17")
    e(f"s_lshl_b32 s{sWQO}, s{sG}, 7")
    e(f"s_add_u32 s{sWKO}, s{sWQO}, 1024")
    e(f"s_mov_b32 s{sWOO}, s{sWQO}")
    if ROT == "ig": e(f"s_add_u32 s{sC}, s{sI}, s{sG}")
    elif ROT == "i2g":
        e(f"s_lshl_b32 s{sC}, s{sG}, 1"); e(f"s_add_u32 s{sC}, s{sC}, s{sI}")
    elif ROT == "i2gh":
        e(f"s_lshl_b32 s{sC}, s{sG}, 1"); e(f"s_add_u32 s{sC}, s{sC}, s{sI}")
        e(f"s_lshr_b32 s{sT2}, s{sG}, 2"); e(f"s_add_u32 s{sC}, s{sC}, s{sT2}")
    else: e(f"s_mov_b32 s{sC}, 0")
    e(f"s_and_b32 s{sC}, s{sC}, 7")
    e("s_waitcnt lgkmcnt(0)")
    ts()
    e(f"s_cmp_eq_u32 s{sB}, 0")
    e(f"s_cselect_b64 {sr(SX,2)}, s[36:37], s[42:43]")
    e(f"s_cselect_b64 {sr(SW,2)}, s[38:39], s[44:45]")
    e(f"s_cselect_b64 {sr(SWO,2)}, s[40:41], s[46:47]")
    e(f"s_mov_b32 s{SX+2}, {2048*512*2}"); e(f"s_mov_b32 s{SX+3}, 0x20000")
    e(f"s_mov_b32 s{SW+2}, {512*1536*2}"); e(f"s_mov_b32 s{SW+3}, 0x20000")
    def pre_chunk(c): dma_chunk(SLOT[c], "nt " if c < NT else "", "nt " if (c == 0 and NT) else "")
    for c in range(1 if EARLY else PRE): pre_chunk(c)
    ts()
    e(f"s_mov_b32 s{SWO+2}, {512*512*2}"); e(f"s_mov_b32 s{SWO+3}, 0x20000")
    e(f"s_mov_b64 {sr(SOUT,2)}, s[48:49]"); e(f"s_mov_b32 s{SOUT+2}, {2048*1024*2}"); e(f"s_mov_b32 s{SOUT+3}, 0x20000")
    e(f"s_mov_b64 {sr(SWS,2)}, s[52:53]"); e(f"s_mov_b32 s{SWS+2}, {WS_SIZE}"); e(f"s_mov_b32 s{SWS+3}, 0x20000")
    e(f"s_lshl_b32 s{sT0}, s{sB}, 5")
    e(f"s_add_u32 s{sT0}, s{sT0}, s{sI}")
    e(f"s_lshl_b32 s{sT0}, s{sT0}, 2")
    e(f"s_load_dword s{sEP}, s[52:53], s{sT0}")
    e(f"s_add_u32 s{sT1}, s{sT0}, 4")
    e(f"s_load_dword s{sEP+1}, s[52:53], s{sT1}")
    e(f"s_add_u32 s{sT1}, s{sT0}, 8")
    e(f"s_load_dword s{sEP+2}, s[52:53], s{sT1}")
    if TOUCH:
        e(f"s_lshl_b32 s{sT0}, s{sB}, 3"); e(f"s_add_u32 s{sT0}, s{sT0}, s{sG}")
        e(f"s_lshl_b32 s{sT0}, s{sT0}, 4"); e(f"s_add_u32 s{sT0}, s{sT0}, s{sI}")
        e(f"s_lshl_b32 s{sT0}, s{sT0}, 15"); e(f"s_add_u32 s{sT0}, s{sT0}, {WS_KV}")
        e(f"s_load_dword s54, s[52:53], s{sT0}")
        e(f"s_lshl_b32 s{sT0}, s{sB}, 4"); e(f"s_add_u32 s{sT0}, s{sT0}, s{sI}")
        e(f"s_lshl_b32 s{sT0}, s{sT0}, 2"); e(f"s_add_u32 s{sT0}, s{sT0}, s{sTB}")
        e(f"s_lshl_b32 s{sT1}, s{sT0}, 15"); e(f"s_add_u32 s{sT1}, s{sT1}, {WS_O}")
        e(f"s_load_dword s54, s[52:53], s{sT1}")
        e(f"s_and_b32 s{sT0}, s{sT0}, 63"); e(f"s_lshl_b32 s{sT0}, s{sT0}, 16")
        e(f"s_load_dword s54, s[48:49], s{sT0}")
        e(f"s_lshl_b32 s{sT0}, s{sWv}, 16")
        e(f"s_load_dword s54, {sr(SWO,2)}, s{sT0}")
    e(f"v_and_b32 v{vT0}, 31, v0")
    e(f"v_lshrrev_b32 v{vT1}, 5, v0")
    e(f"v_bfe_u32 v{vT2}, v0, 1, 3")
    e(f"s_lshl_b32 s{sT2}, s{sTB}, 12")
    e(f"v_lshlrev_b32 v{vT3}, 7, v{vT0}")
    e(f"v_add_u32 v{vT3}, s{sT2}, v{vT3}")
    for s in range(4):
        e(f"v_add_u32 v{vT4}, {2*s}, v{vT1}")
        e(f"v_xor_b32 v{vT4}, v{vT4}, v{vT2}")
        e(f"v_lshl_add_u32 v{vXA+s}, v{vT4}, 4, v{vT3}")
    e(f"v_bfe_u32 v{vT0}, v0, 2, 2")
    e(f"v_lshl_add_u32 v{vT2}, v{vT1}, 3, v{vT0}")
    e(f"v_lshlrev_b32 v{vT2}, 7, v{vT2}")
    e(f"v_bfe_u32 v{vT3}, v0, 4, 1")
    e(f"v_lshlrev_b32 v{vT3}, 1, v{vT3}")
    e(f"v_bfe_u32 v{vT4}, v0, 1, 1")
    e(f"v_add_u32 v{vT3}, v{vT3}, v{vT4}")
    e(f"s_lshl_b32 s{sT2}, s{sHP}, 2")
    e(f"v_add_u32 v{vT3}, s{sT2}, v{vT3}")
    e(f"v_bfe_u32 v{vT4}, v0, 3, 1")
    e(f"v_lshlrev_b32 v{vT4}, 2, v{vT4}")
    e(f"v_xor_b32 v{vT3}, v{vT3}, v{vT4}")
    e(f"v_lshl_add_u32 v{vT2}, v{vT3}, 4, v{vT2}")
    e(f"v_and_b32 v{vT3}, 1, v0")
    e(f"v_lshl_add_u32 v{vWA}, v{vT3}, 3, v{vT2}")
    e(f"v_lshlrev_b32 v{vL16}, 4, v0")
    build_masks()
    e(f"s_mov_b32 s{sVMASK}, 0x0000ffff"); e(f"s_mov_b32 s{sVMASK+1}, 0x0000ffff")
    if EARLY:
        for c in range(1, PRE): pre_chunk(c)

LA = 2
def p1_reads(n):
    s = n % 4
    wb = WB + 8 * (n % 3)
    e(f"ds_read_b128 {vr(XF+4*n,4)}, v{vXA+s}")
    for j, base in enumerate((16384, 24576)):
        e(f"ds_read_b64_tr_b16 {vr(wb+4*j,2)}, v{vWA} offset:{base+s*2048}")
        e(f"ds_read_b64_tr_b16 {vr(wb+4*j+2,2)}, v{vWA} offset:{base+s*2048+512}")
def p1_boundary(c):
    vm = 4
    e(f"s_waitcnt vmcnt({vm})")
    e("s_barrier")
    if c in ((0,) if TSDMA else (0, 2, 4, 6)): ts()
    if c >= 1:
        d = SLOT[c % 5] - SLOT[(c-1) % 5]
        for s in range(4): e(f"v_add_u32 v{vXA+s}, {d & 0xffffffff}, v{vXA+s}")
        e(f"v_add_u32 v{vWA}, {d & 0xffffffff}, v{vWA}")
def p1_refill(n):
    if n < 2:
        dma_piece(SLOT[2], 2*n); dma_piece(SLOT[2], 2*n+1)
    elif n < 22:
        c = (n + 2) // 4 + 2
        dma_piece(SLOT[c % 5], (n + 2) % 4)
    elif n < 30:
        dma_wq_piece(n - 22)

def phase1():
    cm("---- pass A: K^T and V tiles ----")
    p1_boundary(0)
    for n in range(LA): p1_reads(n)
    for n in range(32):
        m = n + LA
        if m < 32:
            if m % 4 == 0: p1_boundary(m // 4)
            p1_reads(m)
            out = 5 * LA
        else:
            out = 5 * (31 - n)
        e(f"s_waitcnt lgkmcnt({out})")
        wb = WB + 8 * (n % 3)
        c0 = "0" if n == 0 else None
        e(f"{MF} {vr(ACCK,16)}, {vr(wb,4)}, {vr(XF+4*n,4)}, {c0 or vr(ACCK,16)}")
        e(f"{MF} {vr(ACCV,16)}, {vr(XF+4*n,4)}, {vr(wb+4,4)}, {c0 or vr(ACCV,16)}")
        p1_refill(n)
    e("s_waitcnt vmcnt(4)")
    e("s_barrier")
    ts()
    lcg(sTOK, sEP + 2)
    e(f"s_cmp_lt_u32 s{sWv}, 4")
    e(f"s_cselect_b32 s{sT0}, s{sEP}, s{sEP+1}")
    lcg(sTOKP, sT0)
    e(f"v_add_u32 v{vWA}, {SLOT[3]-SLOT[2]}, v{vWA}")
    LB = 4
    def rq(n):
        wb = WB + 4 * (n % 6)
        e(f"ds_read_b64_tr_b16 {vr(wb,2)}, v{vWA} offset:{n*2048}")
        e(f"ds_read_b64_tr_b16 {vr(wb+2,2)}, v{vWA} offset:{n*2048+512}")
    for n in range(LB): rq(n)
    cm("---- K/V epilogue: pack, publish, stage own block ----")
    e(f"s_lshl_b32 s{sT0}, s{sB}, 3"); e(f"s_add_u32 s{sT0}, s{sT0}, s{sG}")
    e(f"s_lshl_b32 s{sT0}, s{sT0}, 4"); e(f"s_add_u32 s{sT0}, s{sT0}, s{sI}")
    e(f"s_lshl_b32 s{sFO}, s{sT0}, 7")
    e(f"s_lshl_b32 s{sT1}, s{sTB}, 4"); e(f"s_add_u32 s{sFO}, s{sFO}, s{sT1}")
    e(f"s_lshl_b32 s{sT1}, s{sHP}, 3"); e(f"s_add_u32 s{sFO}, s{sFO}, s{sT1}")
    e(f"s_add_u32 s{sFO}, s{sFO}, {WS_KVFLAG}")
    e(f"s_lshl_b32 s{sKVO}, s{sT0}, 15")
    e(f"s_lshl_b32 s{sT1}, s{sTB}, 13"); e(f"s_add_u32 s{sKVO}, s{sKVO}, s{sT1}")
    e(f"s_lshl_b32 s{sT2}, s{sHP}, 11"); e(f"s_add_u32 s{sKVO}, s{sKVO}, s{sT2}")
    e(f"s_add_u32 s{sKVO}, s{sKVO}, {WS_KV}")
    e(f"v_and_b32 v{vT0}, 15, v0"); e(f"v_lshlrev_b32 v{vT0}, 4, v{vT0}")
    e(f"v_bfe_u32 v{vT1}, v0, 4, 1"); e(f"v_lshl_add_u32 v{vT0}, v{vT1}, 10, v{vT0}")
    e(f"v_lshrrev_b32 v{vT1}, 5, v0"); e(f"v_lshl_add_u32 v{vT0}, v{vT1}, 8, v{vT0}")
    e(f"v_add_u32 v{vT0}, 4096, v{vT0}")
    e(f"s_sub_u32 s{sT3}, 90112, s{sT1}"); e(f"s_add_u32 s{sT3}, s{sT3}, s{sT2}")
    e(f"v_add_u32 v{vT1}, s{sT3}, v{vL16}")
    e(f"v_add_u32 v{vT2}, s{sT3}, v{vT0}")
    for j in range(8): e(f"v_cvt_pk_bf16_f32 v{KD+j}, v{ACCK+2*j}, v{ACCK+2*j+1}")
    for j in range(8): e(f"v_cvt_pk_bf16_f32 v{ACCK+j}, v{ACCV+2*j}, v{ACCV+2*j+1}")
    e(f"buffer_store_dwordx4 {vr(KD,4)}, v{vL16}, {sr(SWS,4)}, s{sKVO} offen sc1")
    e(f"buffer_store_dwordx4 {vr(KD+4,4)}, v{vL16}, {sr(SWS,4)}, s{sKVO} offen offset:1024 sc1")
    e(f"buffer_store_dwordx4 {vr(ACCK,4)}, v{vT0}, {sr(SWS,4)}, s{sKVO} offen sc1")
    e(f"buffer_store_dwordx4 {vr(ACCK+4,4)}, v{vT0}, {sr(SWS,4)}, s{sKVO} offen offset:512 sc1")
    cm("---- pass B: Q^T tile ----")
    for n in range(32):
        m = n + LB
        if m == 16:
            ts()
            e("s_waitcnt vmcnt(0)")
            flag_store(sFO, sTOK)
            e("s_barrier")
            ts()
        if m < 32: rq(m)
        left = min(LB, 31 - n)
        extra = 4 if (n >= 1 and n <= LB) else 0
        cnt = 2 * left + (4 if n == 0 else 0) * 0
        if n >= 1 and n <= LB: cnt = 2 * left + 4 if n + LB > LB else cnt
        e(f"s_waitcnt lgkmcnt({min(cnt,15)})")
        wb = WB + 4 * (n % 6)
        e(f"{MF} {vr(ACCQ,16)}, {vr(wb,4)}, {vr(XF+4*n,4)}, {'0' if n == 0 else vr(ACCQ,16)}")
        if n == 0:
            e(f"ds_write_b128 v{vT1}, {vr(KD,4)}")
            e(f"ds_write_b128 v{vT1}, {vr(KD+4,4)} offset:1024")
            e(f"ds_write_b128 v{vT2}, {vr(ACCK,4)}")
            e(f"ds_write_b128 v{vT2}, {vr(ACCK+4,4)} offset:512")
    ts()

def handoff_kv():
    cm("---- fetch the K/V blocks of the two previous row blocks ----")
    e(f"s_add_u32 s{sT0}, s{sI}, s{sHP}")
    e(f"s_cmp_lt_u32 s{sT0}, 2")
    e("s_cselect_b32 s%d, 1, 0" % sDONE)
    e("s_cbranch_scc1 L_nokv")
    e(f"s_sub_u32 s{sT0}, s{sT0}, 2")
    e(f"s_lshl_b32 s{sT1}, s{sB}, 3"); e(f"s_add_u32 s{sT1}, s{sT1}, s{sG}")
    e(f"s_lshl_b32 s{sT1}, s{sT1}, 4"); e(f"s_add_u32 s{sT0}, s{sT0}, s{sT1}")
    e(f"s_and_b32 s{sT1}, s{sWv}, 3")
    e(f"s_lshl_b32 s{sFO}, s{sT0}, 7"); e(f"s_lshl_b32 s{sT2}, s{sT1}, 4")
    e(f"s_add_u32 s{sFO}, s{sFO}, s{sT2}"); e(f"s_add_u32 s{sFO}, s{sFO}, {WS_KVFLAG}")
    e(f"s_lshl_b32 s{sKVO}, s{sT0}, 15"); e(f"s_lshl_b32 s{sT2}, s{sT1}, 13")
    e(f"s_add_u32 s{sKVO}, s{sKVO}, s{sT2}"); e(f"s_add_u32 s{sKVO}, s{sKVO}, {WS_KV}")
    e(f"v_mov_b32 v{vT0}, 0")
    poll("L_pkv", vT0, sFO, sTOKP, 4)
    e(f"s_add_u32 s{sT0}, s{sKVO}, 4096")
    for j in range(8):
        e(f"buffer_load_dwordx4 {vr(STG+4*j,4)}, v{vL16}, {sr(SWS,4)}, s{sKVO if j < 4 else sT0} offen offset:{(j%4)*1024} sc1")
    lab("L_nokv")
    ts()
    cm("Q: scale by log2(e)/4, pack")
    e(f"s_mov_b32 s{sT0}, 0x3eb8aa3b")
    for j in range(16): e(f"v_mul_f32 v{ACCQ+j}, s{sT0}, v{ACCQ+j}")
    for j in range(8): e(f"v_cvt_pk_bf16_f32 v{QF+j}, v{ACCQ+2*j}, v{ACCQ+2*j+1}")
    for j in range(16): e(f"v_mov_b32 v{CP+j}, 0")
    for j in range(16): e(f"v_mov_b32 v{VF[0]+j}, 0x3f803f80")
    e(f"s_lshl_b32 s{sT0}, s{sTB}, 13"); e(f"s_sub_u32 s{sT0}, {90112+8192}, s{sT0}")
    e(f"s_lshl_b32 s{sT1}, s{sHP}, 11"); e(f"s_add_u32 s{sT0}, s{sT0}, s{sT1}")
    e(f"v_add_u32 v{vKA}, s{sT0}, v{vL16}")
    e(f"v_and_b32 v{vT0}, 15, v0"); e(f"v_lshlrev_b32 v{vT0}, 4, v{vT0}")
    e(f"v_lshrrev_b32 v{vT1}, 5, v0"); e(f"v_lshl_add_u32 v{vT0}, v{vT1}, 8, v{vT0}")
    e(f"s_sub_u32 s{sT0}, s{sT0}, 4096")
    e(f"v_add_u32 v{vVA}, s{sT0}, v{vT0}")
    e(f"v_add_u32 v{vVA2}, 0x10000, v{vVA}")
    e(f"s_lshl_b32 s{sT0}, s{sI}, 2"); e(f"s_add_u32 s{sT0}, s{sT0}, s{sTB}")
    e(f"s_min_u32 s{sLAST}, s{sT0}, 8")
    e(f"s_lshl_b32 s{sT1}, s{sB}, 6"); e(f"s_add_u32 s{sT0}, s{sT0}, s{sT1}")
    e(f"s_lshl_b32 s{sOLD}, s{sT0}, 15"); e(f"s_lshl_b32 s{sT1}, s{sHP}, 11")
    e(f"s_add_u32 s{sOLD}, s{sOLD}, s{sT1}"); e(f"s_add_u32 s{sOLD}, s{sOLD}, {WS_O}")
    e(f"s_lshl_b32 s{sT1}, s{sG}, 12"); e(f"s_add_u32 s{sOST}, s{sOLD}, s{sT1}")
    e(f"s_lshl_b32 s{sFO}, s{sT0}, 9"); e(f"s_lshl_b32 s{sT1}, s{sHP}, 8")
    e(f"s_add_u32 s{sFO}, s{sFO}, s{sT1}"); e(f"s_add_u32 s{sFO}, s{sFO}, {WS_OFLAG}")
    e(f"v_and_b32 v{vFLG}, 7, v0"); e(f"v_lshlrev_b32 v{vFLG}, 3, v{vFLG}")
    e("s_waitcnt lgkmcnt(0)")
    e("s_barrier")
    e(f"s_cmp_eq_u32 s{sDONE}, 1")
    e("s_cbranch_scc1 L_nokv2")
    e(f"s_lshl_b32 s{sT0}, s{sWv}, 13"); e(f"s_sub_u32 s{sT0}, 155648, s{sT0}")
    e(f"v_add_u32 v{vT0}, s{sT0}, v{vL16}")
    for j in range(8):
        e(f"s_waitcnt vmcnt({7-j})")
        e(f"ds_write_b128 v{vT0}, {vr(STG+4*j,4)} offset:{j*1024}")
    lab("L_nokv2")
    if WOLATE == 1: dma_wo_rot()
    e("s_waitcnt lgkmcnt(0)")
    e("s_barrier")
    ts()
    if WOLATE == 2: dma_wo_rot()

def rdK(d):
    e(f"ds_read_b128 {vr(KF[d%2],4)}, v{vKA} offset:{(d-1)*8192}")
def rdV(d):
    a, off = (vVA, d*8192) if d < 8 else (vVA2, 0)
    e(f"s_mov_b64 exec, {sr(sVMASK,2)}")
    e(f"ds_read_b128 {vr(VF[d%2],4)}, v{a} offset:{off}")
    e(f"ds_read_b128 {vr(VF[d%2]+4,4)}, v{a} offset:{off+512}")
    e("s_mov_b64 exec, -1")
def ctup(d): return CD if d == 0 else (CF if d == 8 else CP)

def attention(hh):
    q = QF + 4*hh; kd = KD + 4*hh
    cm(f"---- attention, head {hh} of the wave's pair ----")
    e(f"s_mov_b32 s{sFB}, 0")
    lab(f"L_att{hh}")
    rdK(1); rdV(0)
    e(f"{MF} {vr(S[0],16)}, {vr(kd,4)}, {vr(q,4)}, {vr(CD,16)}")
    for k in range(9):
        s = S[k%2]; p = P[k%2]; pp = P[(k-1)%2]; vp = VF[(k-1)%2]
        e("s_waitcnt lgkmcnt(2)")
        if k < 8:
            e(f"{MF} {vr(S[(k+1)%2],16)}, {vr(KF[(k+1)%2],4)}, {vr(q,4)}, {vr(ctup(k+1),16)}")
        if k == 0: e("s_nop 9")
        for r in range(6): e(f"v_exp_f32 v{s+r}, v{s+r}")
        if k >= 1: e(f"{MF} {vr(OA,16)}, {vr(vp,4)}, {vr(pp,4)}, {'0' if k == 1 else vr(OA,16)}")
        for r in range(6, 12): e(f"v_exp_f32 v{s+r}, v{s+r}")
        if k >= 1: e(f"{MF} {vr(OA,16)}, {vr(vp+4,4)}, {vr(pp+4,4)}, {vr(OA,16)}")
        if k < 7: rdK(k+2)
        if k < 8:
            rdV(k+1)
        for r in range(12, 16): e(f"v_exp_f32 v{s+r}, v{s+r}")
        for j in range(8): e(f"v_cvt_pk_bf16_f32 v{p+j}, v{s+2*j}, v{s+2*j+1}")
        if hh == 1 and k == 4:
            e("s_waitcnt vmcnt(0)")
            flag_store(sOWNF, sTOK)
            e(f"s_mov_b32 s{sDONE}, 1")
        if k < 8:
            e(f"s_cmp_eq_u32 s{sLAST}, {k}")
            e(f"s_cbranch_scc1 L_x{hh}_{k}")
    def tail(k):
        e("s_waitcnt lgkmcnt(0)")
        e("s_nop 0")
        e(f"{MF} {vr(OA,16)}, {vr(VF[k%2],4)}, {vr(P[k%2],4)}, {'0' if k == 0 else vr(OA,16)}")
        e(f"{MF} {vr(OA,16)}, {vr(VF[k%2]+4,4)}, {vr(P[k%2]+4,4)}, {vr(OA,16)}")
    tail(8)
    lab(f"L_fin{hh}")
    e("s_nop 11")
    e(f"v_mov_b32 v{vT0}, v{OA+8}")
    e(f"v_rcp_f32 v{vT1}, v{OA+8}")
    for r in range(8): e(f"v_fma_f32 v{vT0}, v{OA+r}, 0, v{vT0}")
    e(f"s_mov_b32 s{sT0}, 0x71800000")
    e(f"s_mov_b32 s{sT1}, 0x0d800000")
    e(f"v_cmp_nlt_f32 vcc, v{vT0}, s{sT0}" if False else f"v_cmp_ngt_f32 vcc, s{sT0}, v{vT0}")
    e(f"v_cmp_nlt_f32 {sr(sT2,2)}, s{sT1}, v{vT0}")
    for r in range(8): e(f"v_mul_f32 v{OA+r}, v{OA+r}, v{vT1}")
    e(f"s_or_b64 vcc, vcc, {sr(sT2,2)}")
    e(f"s_cbranch_scc1 L_fb{hh}")
    lab(f"L_ok{hh}")
    for j in range(4): e(f"v_cvt_pk_bf16_f32 v{OA+j}, v{OA+2*j}, v{OA+2*j+1}")
    e(f"buffer_store_dwordx4 {vr(OA,4)}, v{vL16}, {sr(SWS,4)}, s{sOST} offen offset:{hh*1024} sc1")
    def stubs():
        for k in range(8):
            lab(f"L_x{hh}_{k}")
            tail(k)
            e(f"s_branch L_fin{hh}")
        lab(f"L_fb{hh}")
        e(f"s_cmp_eq_u32 s{sFB}, 1")
        e(f"s_cbranch_scc1 L_fbdone{hh}")
        e(f"s_mov_b32 s{sFB}, 1")
        e(f"{MF} {vr(S[0],16)}, {vr(kd,4)}, {vr(q,4)}, {vr(CD,16)}")
        e(f"v_mov_b32 v{vT0}, 0xff7fffff")
        e(f"v_mov_b32 v{vT2}, v{vKA}")
        e(f"s_mov_b32 s{sCNT}, 0")
        lab(f"L_fbl{hh}")
        e("s_nop 15")
        for j in range(8): e(f"v_max3_f32 v{vT0}, v{S[0]+2*j}, v{S[0]+2*j+1}, v{vT0}")
        e(f"s_cmp_eq_u32 s{sCNT}, s{sLAST}")
        e(f"s_cbranch_scc1 L_fbm{hh}")
        e(f"s_add_u32 s{sCNT}, s{sCNT}, 1")
        e(f"ds_read_b128 {vr(KF[0],4)}, v{vT2}")
        e(f"v_add_u32 v{vT2}, 8192, v{vT2}")
        e("s_waitcnt lgkmcnt(0)")
        e(f"s_cmp_eq_u32 s{sCNT}, 8")
        e(f"s_cbranch_scc1 L_fbf{hh}")
        e(f"{MF} {vr(S[0],16)}, {vr(KF[0],4)}, {vr(q,4)}, 0")
        e(f"s_branch L_fbl{hh}")
        lab(f"L_fbf{hh}")
        e(f"{MF} {vr(S[0],16)}, {vr(KF[0],4)}, {vr(q,4)}, {vr(CF,16)}")
        e(f"s_branch L_fbl{hh}")
        lab(f"L_fbm{hh}")
        e(f"v_mov_b32 v{vT1}, v{vT0}")
        e("s_nop 1")
        e(f"v_permlane32_swap_b32 v{vT0}, v{vT1}")
        e("s_nop 1")
        e(f"v_max_f32 v{vT0}, v{vT0}, v{vT1}")
        for j in range(16):
            e(f"v_sub_f32 v{CD+j}, v{CD+j}, v{vT0}")
            e(f"v_sub_f32 v{CF+j}, v{CF+j}, v{vT0}")
            e(f"v_sub_f32 v{CP+j}, 0, v{vT0}")
        e("s_nop 1")
        e(f"s_branch L_att{hh}")
        lab(f"L_fbdone{hh}")
        e(f"s_branch L_ok{hh}")
    return stubs

def restore_c(tag):
    e(f"s_cmp_eq_u32 s{sFB}, 0")
    e(f"s_cbranch_scc1 {tag}")
    build_masks()
    for j in range(16): e(f"v_mov_b32 v{CP+j}, 0")
    lab(tag)

def outproj(st):
    cm(f"---- out-projection stage {st} ----")
    e(f"s_add_u32 s{sT0}, s{sOLD}, {st*1024}")
    for gq in range(8):
        e(f"buffer_load_dwordx4 {vr(OIN[gq],4)}, v{vL16}, {sr(SWS,4)}, s{sT0} offen sc1")
        if gq < 7: e(f"s_add_u32 s{sT0}, s{sT0}, 4096")
    def rw(gq):
        f = WOF[gq % 2]
        for ct, a in enumerate((vWOA0, vWOA1)):
            e(f"ds_read_b64_tr_b16 {vr(f+4*ct,2)}, v{a} offset:{gq*8192+st*2048}")
            e(f"ds_read_b64_tr_b16 {vr(f+4*ct+2,2)}, v{a} offset:{gq*8192+st*2048+1024}")
    rw(0)
    for gq in range(8):
        if gq < 7: rw(gq+1)
        e(f"s_waitcnt vmcnt({7-gq}) lgkmcnt({4 if gq < 7 else 0})")
        f = WOF[gq % 2]
        for ct in range(2):
            c = "0" if (st == 0 and gq == 0) else vr(OUTA[ct],16)
            e(f"{MF} {vr(OUTA[ct],16)}, {vr(f+4*ct,4)}, {vr(OIN[gq],4)}, {c}")

def phase23():
    e(f"s_mov_b32 s{sDONE}, 0")
    e(f"s_lshl_b32 s{sOWNF}, s{sG}, 3"); e(f"s_add_u32 s{sOWNF}, s{sOWNF}, s{sFO}")
    st0 = attention(0)
    ts()
    restore_c("L_rc0")
    e(f"v_add_u32 v{vKA}, 1024, v{vKA}"); e(f"v_add_u32 v{vVA}, 1024, v{vVA}"); e(f"v_add_u32 v{vVA2}, 1024, v{vVA2}")
    st1 = attention(1)
    ts()
    e(f"v_bfe_u32 v{vT0}, v0, 2, 2")
    e(f"v_lshrrev_b32 v{vT1}, 5, v0")
    e(f"v_lshl_add_u32 v{vT0}, v{vT1}, 2, v{vT0}")
    e(f"v_lshlrev_b32 v{vT0}, 7, v{vT0}")
    e(f"s_lshl_b32 s{sT0}, s{sHP}, 12")
    e(f"v_add_u32 v{vT0}, s{sT0}, v{vT0}")
    e(f"v_bfe_u32 v{vT1}, v0, 1, 1"); e(f"v_lshl_add_u32 v{vT0}, v{vT1}, 3, v{vT0}")
    e(f"v_and_b32 v{vT1}, 1, v0"); e(f"v_lshlrev_b32 v{vT1}, 1, v{vT1}")
    e(f"v_bfe_u32 v{vT2}, v0, 4, 1"); e(f"v_add_u32 v{vT1}, v{vT1}, v{vT2}")
    e(f"v_bfe_u32 v{vT2}, v0, 3, 1"); e(f"v_lshlrev_b32 v{vT2}, 2, v{vT2}")
    e(f"v_xor_b32 v{vT1}, v{vT1}, v{vT2}")
    e(f"v_lshl_add_u32 v{vWOA0}, v{vT1}, 4, v{vT0}")
    e(f"v_xor_b32 v{vWOA1}, 64, v{vWOA0}")
    e(f"s_cmp_eq_u32 s{sDONE}, 1")
    e("s_cbranch_scc1 L_f0done")
    e("s_waitcnt vmcnt(1)")
    flag_store(sOWNF, sTOK)
    lab("L_f0done")
    e("s_barrier")
    poll("L_po0", vFLG, sFO, sTOK, 2)
    e(f"s_add_u32 s{sOWNF}, s{sOWNF}, 128")
    flag_store(sOWNF, sTOK)
    ts()
    e(f"s_or_b32 s{sT0}, s{sG}, s{sWv}")
    e(f"s_cmp_lg_u32 s{sT0}, 0")
    e("s_cbranch_scc1 L_noep")
    e(f"s_lshl_b32 s{sT0}, s{sB}, 5"); e(f"s_add_u32 s{sT0}, s{sT0}, s{sI}"); e(f"s_lshl_b32 s{sT0}, s{sT0}, 2")
    e(f"s_cmp_eq_u32 s{sI}, 15")
    e(f"s_cselect_b32 s{sT1}, 7, 1")
    e(f"v_mov_b32 v{vT0}, s{sEP}")
    e(f"v_writelane_b32 v{vT0}, s{sEP+1}, 1")
    e(f"v_writelane_b32 v{vT0}, s{sEP+2}, 2")
    e(f"s_mov_b32 s{sT2}, 1664525")
    e(f"v_mul_lo_u32 v{vT0}, v{vT0}, s{sT2}")
    e(f"v_add_u32 v{vT0}, 1013904223, v{vT0}")
    e(f"v_lshlrev_b32 v{vT1}, 2, v0")
    e(f"s_mov_b32 exec_lo, s{sT1}"); e("s_mov_b32 exec_hi, 0")
    e(f"buffer_store_dword v{vT0}, v{vT1}, {sr(SWS,4)}, s{sT0} offen")
    e("s_mov_b64 exec, -1")
    e("s_waitcnt vmcnt(0)")
    lab("L_noep")
    e("s_waitcnt vmcnt(0)")
    outproj(0)
    e(f"s_add_u32 s{sFO}, s{sFO}, 128")
    poll("L_po1", vFLG, sFO, sTOK, 2)
    ts()
    outproj(1)
    cm("---- pairwise reduction over the two head-pair waves, pack, store ----")
    e(f"s_lshl_b32 s{sT0}, s{sWv}, 12"); e(f"s_add_u32 s{sT0}, s{sT0}, 65536")
    e(f"v_add_u32 v{vT0}, s{sT0}, v{vL16}")
    e(f"s_sub_u32 s{sT1}, 7, s{sWv}")
    e(f"s_lshl_b32 s{sT1}, s{sT1}, 12"); e(f"s_add_u32 s{sT1}, s{sT1}, 65536")
    e(f"v_add_u32 v{vT1}, s{sT1}, v{vL16}")
    e(f"s_lshl_b32 s{sT0}, s{sI}, 2"); e(f"s_add_u32 s{sT0}, s{sT0}, s{sTB}"); e(f"s_lshl_b32 s{sT0}, s{sT0}, 16")
    e(f"s_lshl_b32 s{sT1}, s{sB}, 10"); e(f"s_add_u32 s{sT0}, s{sT0}, s{sT1}")
    e(f"s_lshl_b32 s{sT1}, s{sG}, 7"); e(f"s_add_u32 s{sT0}, s{sT0}, s{sT1}")
    e(f"s_lshl_b32 s{sT1}, s{sHP}, 6"); e(f"s_add_u32 s{sT0}, s{sT0}, s{sT1}")
    e(f"v_and_b32 v{vT2}, 31, v0"); e(f"v_lshlrev_b32 v{vT2}, 11, v{vT2}")
    e(f"v_lshrrev_b32 v{vT3}, 5, v0"); e(f"v_lshl_add_u32 v{vT2}, v{vT3}, 5, v{vT2}")
    e(f"s_cmp_eq_u32 s{sHP}, 0")
    e("s_cbranch_scc1 L_red0")
    for keep in (1, 0):
        if keep == 0: lab("L_red0")
        give = OUTA[1-keep]; mine = OUTA[keep]
        e("s_nop 3")
        for j in range(4): e(f"ds_write_b128 v{vT0}, {vr(give+4*j,4)} offset:{j*1024}")
        e("s_waitcnt lgkmcnt(0)")
        e("s_barrier")
        for j in range(4): e(f"ds_read_b128 {vr(S[0]+4*j,4)}, v{vT1} offset:{j*1024}")
        for j in range(4):
            e(f"s_waitcnt lgkmcnt({3-j})")
            for r in range(4): e(f"v_add_f32 v{mine+4*j+r}, v{mine+4*j+r}, v{S[0]+4*j+r}")
        for j in range(8): e(f"v_cvt_pk_bf16_f32 v{mine+j}, v{mine+2*j}, v{mine+2*j+1}")
        e(f"buffer_store_dwordx4 {vr(mine,4)}, v{vT2}, {sr(SOUT,4)}, s{sT0} offen")
        e(f"buffer_store_dwordx4 {vr(mine+4,4)}, v{vT2}, {sr(SOUT,4)}, s{sT0} offen offset:16")
        if keep == 1: e("s_branch L_stored")
    lab("L_stored")
    if DIAG:
        e("s_waitcnt vmcnt(0)")
        ts()
        e(f"s_memrealtime {sr(sT2,2)}"); e("s_waitcnt lgkmcnt(0)"); e(f"s_mov_b32 s{sTS+21}, s{sT2}")
        for n in list(range(tsn[0])) + [20, 21]:
            e(f"v_writelane_b32 v{vT0}, s{sTS+n}, {n}")
        if "--dbg" in sys.argv:
            e("s_mov_b64 s[4:5], s[50:51]"); e("s_mov_b32 s6, 256"); e("s_mov_b32 s7, 0x20000")
            e(f"s_not_b32 s{sT1}, s{sTS+20}")
            e(f"v_mov_b32 v{vT2}, s{sTS+21}"); e(f"v_writelane_b32 v{vT2}, s{sT1}, 1")
            sel = [2, 3, 7, 8, 9, 10, 11, 12, 13, 14, 15, 16, 17]
            for j, n in enumerate(sel):
                e(f"s_sub_u32 s{sT1}, s{sTS+n}, s{sTS}")
                e(f"v_writelane_b32 v{vT2}, s{sT1}, {2+j}")
            e(f"s_lshl_b32 s{sT1}, s2, 3"); e(f"s_add_u32 s{sT1}, s{sT1}, s{sWv}")
            e(f"s_cmp_eq_u32 s{sT1}, {opt('dbgw', '805')}")
            e(f"s_cselect_b32 s{sT1}, 0x7fff, 3")
            e(f"v_lshlrev_b32 v{vT1}, 2, v0")
            e(f"s_mov_b32 exec_lo, s{sT1}"); e("s_mov_b32 exec_hi, 0")
            e(f"buffer_atomic_umax v{vT2}, v{vT1}, s[4:7], 0 offen")
            e("s_mov_b64 exec, -1")
        e(f"s_lshl_b32 s{sT0}, s2, 3"); e(f"s_add_u32 s{sT0}, s{sT0}, s{sWv}"); e(f"s_lshl_b32 s{sT0}, s{sT0}, 7")
        e(f"s_add_u32 s{sT0}, s{sT0}, {WS_DIAG}")
        e(f"v_lshlrev_b32 v{vT1}, 2, v0")
        e("s_mov_b32 exec_lo, -1"); e("s_mov_b32 exec_hi, 0")
        e(f"buffer_store_dword v{vT0}, v{vT1}, {sr(SWS,4)}, s{sT0} offen")
    lab("L_end")
    e("s_endpgm")
    st0(); st1()
    lab("L_last")
    e("s_endpgm")

hdr = open("cdna_kernels/%s.s.ref" % NAME).read().split("\n")
out = [l for l in hdr if l.startswith(";") and "@launch" not in l and "Override" not in l and "grid=ceil" not in l]
out.append("; @launch grid=(256,1,1) block=(512,1,1) lds=163840")
out += ['.amdgcn_target "amdgcn-amd-amdhsa--gfx950"', ".text", f".globl {NAME}_kernel", ".p2align 8",
        f".type {NAME}_kernel,@function", f"{NAME}_kernel:"]
prologue(); phase1(); handoff_kv(); phase23()
out += L
out += ['.section .rodata,"a"', ".p2align 6", f".amdhsa_kernel {NAME}_kernel",
        "  .amdhsa_next_free_vgpr 256", "  .amdhsa_next_free_sgpr 102", "  .amdhsa_accum_offset 256",
        "  .amdhsa_group_segment_fixed_size 0", "  .amdhsa_kernarg_size 72", "  .amdhsa_user_sgpr_count 2",
        "  .amdhsa_user_sgpr_kernarg_segment_ptr 1", "  .amdhsa_system_sgpr_workgroup_id_x 1", ".end_amdhsa_kernel"]
print("\n".join(out))
```

```python
import sys
DIAG = "--diag" in sys.argv
def opt(name, dflt):
    for a in sys.argv[1:]:
        if a.startswith("--" + name + "="): return a.split("=", 1)[1]
    return dflt
ROT = opt("rot", "i2g")
PRE = 2
NT = int(opt("nt", "0"))
NAME = "concat_heads__sliding_block__sliding_block__prompt"
L = []
def e(s=""): L.append("    " + s)
def lab(s): L.append(s + ":")
def cm(s): L.append("    ; " + s)
def vr(a, n=1): return f"v{a}" if n == 1 else f"v[{a}:{a+n-1}]"
def sr(a, n=1): return f"s{a}" if n == 1 else f"s[{a}:{a+n-1}]"

WS_EPOCH = 0x0
WS_ANN = 0x1000
WS_KVFLAG = 0x40000
WS_OFLAG = 0x10000
WS_KV = 0x200000
WS_O = 0x1000000
WS_DIAG = 0x1800000
WS_SIZE = 0x2000000
SX, SW, SWO, SOUT, SWS = 4, 8, 12, 16, 20
sB, sI, sG, sWv, sTB, sHP = 24, 25, 26, 27, 28, 29
sTOK, sTOKP = 30, 32
sXO, sWKO, sWVO, sWQO, sWOO = 34, 35, 54, 55, 56
sM2K, sM1K = 57, 58
sLAST, sFB, sCNT, sT0, sT1, sT2, sT3 = 59, 60, 61, 62, 63, 64, 65
sEP = 68
sVMASK = 72
sKVO, sOST, sOLD, sFO = 74, 75, 76, 77
sDONE = 78
sOWNF = 79
sTM = 66
sC = 3
sTS = 80
vX0, vX1, vW, vWO = 1, 2, 3, 4
vXA = 5
vWA = 9
vL16 = 10
vT0, vT1, vT2, vT3, vT4 = 11, 12, 13, 14, 15
ACCK, ACCV, ACCQ = 16, 32, 48
WB = 64
CD, CF = 88, 104
KD = 120
XF = 128
QF = 64
CP = 128; S = [144, 160]; P = [176, 184]; KF = [192, 196]; VF = [200, 208]; OA = 216
OUTA = [16, 32]
OIN = [48, 52, 56, 60, 72, 76, 80, 84]
WOF = [232, 240]
vKA, vVA, vVA2, vWOA0, vWOA1, vFLG = 248, 249, 250, 251, 252, 253
vVW = 254
STG = 16

SLOT = [0, 32768, 65536, 98304, 131072]
tsn = [0]
ndma = [0]
TSDMA = "--tsdma" in sys.argv
FLAGSTEP = int(opt("fs", "31"))
EARLY = int(opt("early", "1"))
TOUCH = int(opt("touch", "1"))
FK = int(opt("fk", "2"))
PKS = [int(x) for x in opt("pks", "4,6").split(",")]
LOCAL = int(opt("local", "1"))
PFQ = int(opt("pfq", "0"))
PFO = int(opt("pfo", "0"))
FSC1 = int(opt("fsc1", "0"))
KVLD = {"sc1": " sc1", "plain": "", "nt": " nt", "sc0": " sc0"}[opt("kvld", "sc1")]
KVST = {"plain": "", "nt": " nt", "sc0": " sc0"}[opt("kvst", "plain")]
FILL = int(opt("fill", "1"))
FILLP = {"nt": " nt", "plain": ""}[opt("fillp", "nt")]
WOAT = int(opt("woat", "1"))
PRIO = int(opt("prio", "1"))
PTH = [[int(x) for x in s_.split(",")] for s_ in opt("pth", "4,9,14/6,11,16").split("/")]
CPF = int(opt("cpf", "0"))
WOLATE = int(opt("wolate", "2"))
def ts():
    if DIAG:
        n = tsn[0]; tsn[0] += 1
        e(f"s_memtime {sr(sTM,2)}"); e("s_waitcnt lgkmcnt(0)"); e(f"s_mov_b32 s{sTS+n}, s{sTM}")

def dma(srd, voff, soff, ldsbase_s, ldsimm, pol=""):
    e(f"s_add_u32 m0, s{ldsbase_s}, {ldsimm}")
    e("s_nop 0")
    e(f"buffer_load_dwordx4 v{voff}, {sr(srd,4)}, s{soff} offen {pol}lds")
    ndma[0] += 1
    if TSDMA and ndma[0] in (1, 2, 3, 4, 6, 8): ts()

def next_c():
    e(f"s_add_u32 s{sC}, s{sC}, 1")
    e(f"s_and_b32 s{sC}, s{sC}, 7")
sEN1, sEN2, sXCC, sLOC, sPID, sANN = 36, 37, 38, 44, 45, 46
sWOC, sEOK = 98, 99
sCX, sCW = 98, 99
def dma_piece(slot, j, px="", pw=""):
    if j == 0:
        e(f"s_lshl_b32 s{sCX}, s{sC}, 7")
        e(f"s_mul_i32 s{sCW}, s{sC}, {64*3072}")
        e(f"s_add_u32 s{sCX}, s{sCX}, s{sXO}")
        e(f"s_add_u32 s{sCW}, s{sCW}, s{sWKO}")
        dma(SX, vX0, sCX, sM2K, slot, px)
    elif j == 1: dma(SX, vX1, sCX, sM2K, slot + 1024, px)
    elif j == 2: dma(SW, vW, sCW, sM1K, slot + 16384, pw)
    else:
        e(f"s_add_u32 s{sCW}, s{sCW}, 1024")
        dma(SW, vW, sCW, sM1K, slot + 24576, pw)
        next_c()
def dma_chunk(slot, px="", pw=""):
    for j in range(4): dma_piece(slot, j, px, pw)
def dma_wq_piece(q):
    e(f"s_mul_i32 s{sCW}, s{sC}, {64*3072}")
    e(f"s_add_u32 s{sCW}, s{sCW}, s{sWQO}")
    dma(SW, vW, sCW, sM1K, SLOT[3] + q*8192)
    next_c()
def dma_wo_rot(cnt=8):
    for q in range(cnt):
        e(f"s_lshl_b32 s{sT0}, s{sC}, 13")
        e(f"s_lshl_b32 s{sT1}, s{sC}, 16")
        e(f"s_add_u32 s{sT0}, s{sT0}, s{sM1K}")
        e(f"s_add_u32 s{sT1}, s{sT1}, s{sWOO}")
        dma(SWO, vWO, sT1, sT0, 0)
        next_c()
def dma_wo(half):
    if WOLATE: return
    for q in range(4):
        dma(SWO, vWO, sWOO, sM1K, (half*4+q)*8192)
        e(f"s_add_u32 s{sWOO}, s{sWOO}, {64*1024}")

def lcg(dst, src):
    e(f"s_mul_i32 s{dst}, s{src}, 1664525")
    e(f"s_add_u32 s{dst}, s{dst}, 1013904223")
    e(f"s_xor_b32 s{dst+1}, s{dst}, 0x9e3779b9")

def build_masks():
    e(f"v_and_b32 v{vT0}, 31, v0")
    e(f"v_bfe_u32 v{vT1}, v0, 5, 1")
    e(f"v_lshlrev_b32 v{vT1}, 2, v{vT1}")
    e(f"v_sub_u32 v{vT0}, v{vT0}, v{vT1}")
    e(f"v_mov_b32 v{vT1}, 0xf149f2ca")
    e(f"v_mov_b32 v{vT2}, 0")
    for r in range(16):
        kk = 8*(r//4) + r % 4
        e(f"v_cmp_le_i32 vcc, {kk}, v{vT0}")
        e("s_nop 1")
        e(f"v_cndmask_b32 v{CD+r}, v{vT1}, v{vT2}, vcc")
        e(f"v_cndmask_b32 v{CF+r}, v{vT2}, v{vT1}, vcc")

def poll(name, voff, soff, tok, nwords):
    e(f"s_mov_b32 s{sCNT}, 0")
    lab(name)
    e(f"buffer_load_dwordx{nwords} {vr(vT0 + 1, nwords)}, v{voff}, {sr(SWS,4)}, s{soff} offen sc1")
    e(f"s_add_u32 s{sCNT}, s{sCNT}, 1")
    e("s_waitcnt vmcnt(0)")
    e(f"v_xor_b32 v{vT0+1}, s{tok}, v{vT0+1}")
    e(f"v_xor_b32 v{vT0+2}, s{tok+1}, v{vT0+2}")
    if nwords == 4:
        e(f"v_xor_b32 v{vT0+3}, s{tok}, v{vT0+3}")
        e(f"v_xor_b32 v{vT0+4}, s{tok+1}, v{vT0+4}")
        e(f"v_or3_b32 v{vT0+1}, v{vT0+1}, v{vT0+3}, v{vT0+4}")
    e(f"v_or_b32 v{vT0+1}, v{vT0+1}, v{vT0+2}")
    e(f"v_cmp_ne_u32 vcc, 0, v{vT0+1}")
    e(f"s_cbranch_vccz {name}_ok")
    e(f"s_cmp_lt_u32 s{sCNT}, 0x400000")
    e(f"s_cbranch_scc1 {name}")
    lab(name + "_ok")

def flag_store(soff, tok, pol=" sc1"):
    e(f"v_mov_b32 v{vT0+1}, s{tok}")
    e(f"v_mov_b32 v{vT0+2}, s{tok+1}")
    e(f"v_mov_b32 v{vT0}, 0")
    e("s_mov_b64 exec, 1")
    e(f"buffer_store_dwordx2 {vr(vT0+1,2)}, v{vT0}, {sr(SWS,4)}, s{soff} offen{pol}")
    e("s_mov_b64 exec, -1")

MF = "v_mfma_f32_32x32x16_bf16"

def prologue():
    e("s_cmp_ge_u32 s2, 256")
    e("s_cbranch_scc1 L_end")
    e("s_load_dwordx16 s[36:51], s[0:1], 0")
    e("s_load_dwordx2 s[52:53], s[0:1], 64")
    if DIAG:
        e(f"s_memrealtime {sr(sT2,2)}"); e("s_waitcnt lgkmcnt(0)"); e(f"s_mov_b32 s{sTS+20}, s{sT2}")
    ts()
    e(f"v_lshrrev_b32 v{vT0}, 6, v0")
    if CPF:
        e(f"s_getpc_b64 {sr(sT2,2)}")
        lab("L_pc")
        e(f"v_lshlrev_b32 v{vT1}, 6, v0")
        e(f"v_min_u32 v{vT1}, L_last-L_pc, v{vT1}")
        e(f"global_load_dword v255, v{vT1}, {sr(sT2,2)}")
    e(f"s_and_b32 s{sT0}, s2, 7")
    e(f"v_readfirstlane_b32 s{sWv}, v{vT0}")
    e(f"s_lshr_b32 s{sT1}, s2, 3")
    e(f"s_lshr_b32 s{sB}, s{sT0}, 2")
    e(f"s_bfe_u32 s{sI}, s{sT0}, 0x10001")
    e(f"s_lshl_b32 s{sI}, s{sI}, 3")
    e(f"s_lshr_b32 s{sT2}, s{sT1}, 2")
    e(f"s_add_u32 s{sI}, s{sI}, s{sT2}")
    e(f"s_and_b32 s{sG}, s{sT0}, 1")
    e(f"s_lshl_b32 s{sG}, s{sG}, 2")
    e(f"s_and_b32 s{sT2}, s{sT1}, 3")
    e(f"s_add_u32 s{sG}, s{sG}, s{sT2}")
    e("v_and_b32 v0, 63, v0")
    e(f"s_lshr_b32 s{sHP}, s{sWv}, 2")
    e(f"s_sub_u32 s{sT2}, 7, s{sWv}")
    e(f"s_cmp_lt_u32 s{sWv}, 4")
    e(f"s_cselect_b32 s{sTB}, s{sWv}, s{sT2}")
    e(f"s_lshl_b32 s{sM2K}, s{sWv}, 11")
    e(f"s_lshl_b32 s{sM1K}, s{sWv}, 10")
    e(f"v_lshrrev_b32 v{vT0}, 3, v0")
    e(f"v_and_b32 v{vT1}, 7, v0")
    e(f"v_lshrrev_b32 v{vT2}, 4, v0")
    e(f"v_xor_b32 v{vT3}, v{vT1}, v{vT2}")
    e(f"s_lshl_b32 s{sT2}, s{sWv}, 4")
    e(f"v_add_u32 v{vT4}, s{sT2}, v{vT0}")
    e(f"v_lshlrev_b32 v{vT4}, 10, v{vT4}")
    e(f"v_lshl_add_u32 v{vX0}, v{vT3}, 4, v{vT4}")
    e(f"v_xor_b32 v{vT3}, 4, v{vT3}")
    e(f"v_lshl_add_u32 v{vX1}, v{vT3}, 4, v{vT4}")
    e(f"v_add_u32 v{vX1}, 8192, v{vX1}")
    e(f"v_and_b32 v{vT2}, 1, v{vT2}")
    e(f"v_lshlrev_b32 v{vT2}, 2, v{vT2}")
    e(f"v_xor_b32 v{vT1}, v{vT1}, v{vT2}")
    e(f"s_lshl_b32 s{sT2}, s{sWv}, 3")
    e(f"v_add_u32 v{vT0}, s{sT2}, v{vT0}")
    e(f"v_mul_u32_u24 v{vT4}, 3072, v{vT0}")
    e(f"v_lshl_add_u32 v{vW}, v{vT1}, 4, v{vT4}")
    e(f"v_lshlrev_b32 v{vT4}, 10, v{vT0}")
    e(f"v_lshl_add_u32 v{vWO}, v{vT1}, 4, v{vT4}")
    e(f"s_lshl_b32 s{sXO}, s{sI}, 17")
    e(f"s_lshl_b32 s{sWQO}, s{sG}, 7")
    e(f"s_add_u32 s{sWKO}, s{sWQO}, 1024")
    e(f"s_mov_b32 s{sWOO}, s{sWQO}")
    if ROT == "ig": e(f"s_add_u32 s{sC}, s{sI}, s{sG}")
    elif ROT == "i2g":
        e(f"s_lshl_b32 s{sC}, s{sG}, 1"); e(f"s_add_u32 s{sC}, s{sC}, s{sI}")
    elif ROT == "i2gh":
        e(f"s_lshl_b32 s{sC}, s{sG}, 1"); e(f"s_add_u32 s{sC}, s{sC}, s{sI}")
        e(f"s_lshr_b32 s{sT2}, s{sG}, 2"); e(f"s_add_u32 s{sC}, s{sC}, s{sT2}")
    else: e(f"s_mov_b32 s{sC}, 0")
    e(f"s_and_b32 s{sC}, s{sC}, 7")
    e("s_waitcnt lgkmcnt(0)")
    ts()
    e(f"s_cmp_eq_u32 s{sB}, 0")
    e(f"s_cselect_b64 {sr(SX,2)}, s[36:37], s[42:43]")
    e(f"s_cselect_b64 {sr(SW,2)}, s[38:39], s[44:45]")
    e(f"s_cselect_b64 {sr(SWO,2)}, s[40:41], s[46:47]")
    e(f"s_mov_b32 s{SX+2}, {2048*512*2}"); e(f"s_mov_b32 s{SX+3}, 0x20000")
    e(f"s_mov_b32 s{SW+2}, {512*1536*2}"); e(f"s_mov_b32 s{SW+3}, 0x20000")
    def pre_chunk(c): dma_chunk(SLOT[c], "nt " if c < NT else "", "nt " if (c == 0 and NT) else "")
    for c in range(1 if EARLY else PRE): pre_chunk(c)
    ts()
    e(f"s_mov_b32 s{SWO+2}, {512*512*2}"); e(f"s_mov_b32 s{SWO+3}, 0x20000")
    e(f"s_mov_b64 {sr(SOUT,2)}, s[48:49]"); e(f"s_mov_b32 s{SOUT+2}, {2048*1024*2}"); e(f"s_mov_b32 s{SOUT+3}, 0x20000")
    e(f"s_mov_b64 {sr(SWS,2)}, s[52:53]"); e(f"s_mov_b32 s{SWS+2}, {WS_SIZE}"); e(f"s_mov_b32 s{SWS+3}, 0x20000")
    e(f"s_lshl_b32 s{sT0}, s{sB}, 5")
    e(f"s_add_u32 s{sT0}, s{sT0}, s{sI}")
    e(f"s_lshl_b32 s{sT0}, s{sT0}, 2")
    e(f"s_load_dword s{sEP}, s[52:53], s{sT0}")
    e(f"s_add_u32 s{sT1}, s{sT0}, 4")
    e(f"s_load_dword s{sEP+1}, s[52:53], s{sT1}")
    e(f"s_add_u32 s{sT1}, s{sT0}, 8")
    e(f"s_load_dword s{sEP+2}, s[52:53], s{sT1}")
    e(f"s_add_u32 s{sT1}, s{sT0}, 12")
    e(f"s_load_dword s{sEN1}, s[52:53], s{sT1}")
    e(f"s_add_u32 s{sT1}, s{sT0}, 16")
    e(f"s_load_dword s{sEN2}, s[52:53], s{sT1}")
    e(f"s_getreg_b32 s{sXCC}, hwreg(HW_REG_XCC_ID, 0, 4)")
    e(f"v_and_b32 v{vT0}, 31, v0")
    e(f"v_lshrrev_b32 v{vT1}, 5, v0")
    e(f"v_bfe_u32 v{vT2}, v0, 1, 3")
    e(f"s_lshl_b32 s{sT2}, s{sTB}, 12")
    e(f"v_lshlrev_b32 v{vT3}, 7, v{vT0}")
    e(f"v_add_u32 v{vT3}, s{sT2}, v{vT3}")
    for s in range(4):
        e(f"v_add_u32 v{vT4}, {2*s}, v{vT1}")
        e(f"v_xor_b32 v{vT4}, v{vT4}, v{vT2}")
        e(f"v_lshl_add_u32 v{vXA+s}, v{vT4}, 4, v{vT3}")
    e(f"v_bfe_u32 v{vT0}, v0, 2, 2")
    e(f"v_lshl_add_u32 v{vT2}, v{vT1}, 3, v{vT0}")
    e(f"v_lshlrev_b32 v{vT2}, 7, v{vT2}")
    e(f"v_bfe_u32 v{vT3}, v0, 4, 1")
    e(f"v_lshlrev_b32 v{vT3}, 1, v{vT3}")
    e(f"v_bfe_u32 v{vT4}, v0, 1, 1")
    e(f"v_add_u32 v{vT3}, v{vT3}, v{vT4}")
    e(f"s_lshl_b32 s{sT2}, s{sHP}, 2")
    e(f"v_add_u32 v{vT3}, s{sT2}, v{vT3}")
    e(f"v_bfe_u32 v{vT4}, v0, 3, 1")
    e(f"v_lshlrev_b32 v{vT4}, 2, v{vT4}")
    e(f"v_xor_b32 v{vT3}, v{vT3}, v{vT4}")
    e(f"v_lshl_add_u32 v{vT2}, v{vT3}, 4, v{vT2}")
    e(f"v_and_b32 v{vT3}, 1, v0")
    e(f"v_lshl_add_u32 v{vWA}, v{vT3}, 3, v{vT2}")
    e(f"v_lshlrev_b32 v{vL16}, 4, v0")
    build_masks()
    e(f"s_mov_b32 s{sVMASK}, 0x0000ffff"); e(f"s_mov_b32 s{sVMASK+1}, 0x0000ffff")
    e("s_waitcnt lgkmcnt(0)")
    lcg(sTOK, sEP + 2)
    e(f"s_cmp_lt_u32 s{sWv}, 4")
    e(f"s_cselect_b32 s{sT0}, s{sEP}, s{sEP+1}")
    lcg(sTOKP, sT0)
    e(f"s_lshl_b32 s{sT0}, s{sB}, 3"); e(f"s_add_u32 s{sT0}, s{sT0}, s{sG}")
    e(f"s_lshl_b32 s{sT0}, s{sT0}, 4"); e(f"s_add_u32 s{sPID}, s{sT0}, s{sI}")
    e(f"s_lshl_b32 s{sANN}, s{sPID}, 3"); e(f"s_add_u32 s{sANN}, s{sANN}, {WS_ANN}")
    e(f"s_cmp_lg_u32 s{sWv}, 0")
    e("s_cbranch_scc1 L_noann")
    e(f"s_add_u32 s{sT2}, s{sTOK}, s{sXCC}"); e(f"s_mov_b32 s{sT3}, s{sTOK+1}")
    flag_store(sANN, sT2)
    lab("L_noann")
    if TOUCH:
        e(f"s_lshl_b32 s{sT0}, s{sPID}, 15"); e(f"s_add_u32 s{sT0}, s{sT0}, {WS_KV}")
        e(f"v_mov_b32 v{vT0}, s{sT0}")
        e(f"s_lshl_b32 s{sT0}, s{sB}, 4"); e(f"s_add_u32 s{sT0}, s{sT0}, s{sI}")
        e(f"s_lshl_b32 s{sT0}, s{sT0}, 2"); e(f"s_add_u32 s{sT0}, s{sT0}, s{sTB}")
        e(f"s_lshl_b32 s{sT1}, s{sT0}, 15"); e(f"s_add_u32 s{sT1}, s{sT1}, {WS_O}")
        e(f"v_writelane_b32 v{vT0}, s{sT1}, 1")
        e(f"s_and_b32 s{sT2}, s{sT0}, 63"); e(f"s_lshl_b32 s{sT2}, s{sT2}, 16")
        e(f"s_lshl_b32 s{sT0}, s{sT0}, 1"); e(f"s_add_u32 s{sT0}, s{sT0}, s{sHP}")
        e(f"s_lshl_b32 s{sT0}, s{sT0}, 8"); e(f"s_add_u32 s{sT0}, s{sT0}, {WS_OFLAG}")
        e(f"v_writelane_b32 v{vT0}, s{sT0}, 2")
        e(f"s_add_u32 s{sT0}, s{sT0}, 128")
        e(f"v_writelane_b32 v{vT0}, s{sT0}, 3")
        e(f"s_lshl_b32 s{sT0}, s{sPID}, 2"); e(f"s_add_u32 s{sT0}, s{sT0}, s{sWv}")
        e(f"s_lshl_b32 s{sT0}, s{sT0}, 8"); e(f"s_add_u32 s{sT0}, s{sT0}, {WS_KVFLAG - 2048}")
        e(f"v_writelane_b32 v{vT0}, s{sT0}, 4")
        e(f"s_add_u32 s{sT0}, s{sT0}, 128")
        e(f"v_writelane_b32 v{vT0}, s{sT0}, 5")
        e("s_mov_b64 exec, 0x3f")
        e(f"buffer_load_dword v254, v{vT0}, {sr(SWS,4)}, 0 offen sc1")
        e("s_mov_b64 exec, 1")
        e(f"buffer_load_dword v253, off, {sr(SOUT,4)}, s{sT2}")
        e(f"buffer_load_dword v252, off, {sr(SWO,4)}, s{sWOO}")
        e("s_mov_b64 exec, -1")
    if EARLY:
        for c in range(1, PRE): pre_chunk(c)
    if PFQ:
        e(f"s_add_u32 s{sT0}, s{sC}, 6"); e(f"s_and_b32 s{sT0}, s{sT0}, 7")
        e(f"s_lshl_b32 s{sT0}, s{sT0}, 3"); e(f"s_add_u32 s{sT0}, s{sT0}, s{sWv}")
        e(f"s_mul_i32 s{sT0}, s{sT0}, {8*3072}"); e(f"s_add_u32 s{sT0}, s{sT0}, s{sWQO}")
        e(f"s_add_u32 s40, s{SW}, s{sT0}"); e(f"s_addc_u32 s41, s{SW+1}, 0")
        for j in range(8):
            for h in range(PFQ): e(f"s_load_dword s54, s[40:41], {j*3072 + h*64}")

LA = 2
def p1_reads(n):
    s = n % 4
    wb = WB + 8 * (n % 3)
    e(f"ds_read_b128 {vr(XF+4*n,4)}, v{vXA+s}")
    for j, base in enumerate((16384, 24576)):
        e(f"ds_read_b64_tr_b16 {vr(wb+4*j,2)}, v{vWA} offset:{base+s*2048}")
        e(f"ds_read_b64_tr_b16 {vr(wb+4*j+2,2)}, v{vWA} offset:{base+s*2048+512}")
def p1_boundary(c):
    vm = 4
    e(f"s_waitcnt vmcnt({vm})")
    e("s_barrier")
    if c in ((0,) if TSDMA else (0, 2, 4, 6)): ts()
    if c >= 1:
        d = SLOT[c % 5] - SLOT[(c-1) % 5]
        for s in range(4): e(f"v_add_u32 v{vXA+s}, {d & 0xffffffff}, v{vXA+s}")
        e(f"v_add_u32 v{vWA}, {d & 0xffffffff}, v{vWA}")
def p1_refill(n):
    if n < 2:
        dma_piece(SLOT[2], 2*n); dma_piece(SLOT[2], 2*n+1)
    elif n < 22:
        c = (n + 2) // 4 + 2
        dma_piece(SLOT[c % 5], (n + 2) % 4)
    elif n < 30:
        dma_wq_piece(n - 22)

def phase1():
    cm("---- pass A: K^T and V tiles ----")
    p1_boundary(0)
    for n in range(LA): p1_reads(n)
    for n in range(32):
        m = n + LA
        if m < 32:
            if m % 4 == 0: p1_boundary(m // 4)
            p1_reads(m)
            out = 5 * LA
        else:
            out = 5 * (31 - n)
        e(f"s_waitcnt lgkmcnt({out})")
        wb = WB + 8 * (n % 3)
        c0 = "0" if n == 0 else None
        e(f"{MF} {vr(ACCK,16)}, {vr(wb,4)}, {vr(XF+4*n,4)}, {c0 or vr(ACCK,16)}")
        e(f"{MF} {vr(ACCV,16)}, {vr(XF+4*n,4)}, {vr(wb+4,4)}, {c0 or vr(ACCV,16)}")
        p1_refill(n)
        if n == 21:
            e(f"v_lshlrev_b32 v{vT0}, 3, v0")
            e(f"s_mov_b64 exec, 3")
            e(f"buffer_load_dwordx2 {vr(vT3,2)}, v{vT0}, {sr(SWS,4)}, s{sANN} offen offset:8 sc1")
            e(f"s_mov_b64 exec, -1")
        if n == 28:
            e(f"s_lshl_b32 s{sFO}, s{sPID}, 10")
            e(f"s_lshl_b32 s{sT1}, s{sTB}, 8"); e(f"s_add_u32 s{sFO}, s{sFO}, s{sT1}")
            e(f"s_lshl_b32 s{sT1}, s{sHP}, 7"); e(f"s_add_u32 s{sFO}, s{sFO}, s{sT1}")
            e(f"s_add_u32 s{sFO}, s{sFO}, {WS_KVFLAG}")
            e(f"s_lshl_b32 s{sKVO}, s{sPID}, 15")
            e(f"s_lshl_b32 s{sT1}, s{sTB}, 13"); e(f"s_add_u32 s{sKVO}, s{sKVO}, s{sT1}")
            e(f"s_lshl_b32 s{sT2}, s{sHP}, 11"); e(f"s_add_u32 s{sKVO}, s{sKVO}, s{sT2}")
            e(f"s_add_u32 s{sKVO}, s{sKVO}, {WS_KV}")
            e(f"v_and_b32 v{vX1}, 31, v0"); e(f"v_lshlrev_b32 v{vX1}, 6, v{vX1}")
            e(f"v_lshrrev_b32 v{vX0}, 5, v0"); e(f"v_lshl_add_u32 v{vX1}, v{vX0}, 12, v{vX1}")
        if n == 29 and FILL:
            e(f"buffer_load_dword v{vX0}, v{vX1}, {sr(SWS,4)}, s{sKVO} offen{FILLP}")
        if n == 27:
            lcg(40, sEN1); lcg(42, sEN2)
            e(f"s_add_u32 s40, s40, s{sXCC}"); e(f"s_add_u32 s42, s42, s{sXCC}")
            e(f"v_readlane_b32 s{sT0}, v{vT3}, 0"); e(f"v_readlane_b32 s{sT1}, v{vT4}, 0")
            e(f"v_readlane_b32 s{sT2}, v{vT3}, 1"); e(f"v_readlane_b32 s{sT3}, v{vT4}, 1")
            e(f"s_cmp_eq_u64 {sr(sT0,2)}, s[40:41]"); e(f"s_cselect_b32 s40, 1, 0")
            e(f"s_cmp_eq_u64 {sr(sT2,2)}, s[42:43]"); e(f"s_cselect_b32 s41, 1, 0")
            e(f"s_cmp_ge_u32 s{sI}, 15"); e(f"s_cselect_b32 s40, 1, s40")
            e(f"s_cmp_ge_u32 s{sI}, 14"); e(f"s_cselect_b32 s41, 1, s41")
            e(f"s_and_b32 s{sLOC}, s40, s41")
            if not LOCAL: e(f"s_mov_b32 s{sLOC}, 0")
    e(f"s_waitcnt vmcnt({4 + FILL})")
    e("s_barrier")
    ts()
    e(f"v_add_u32 v{vWA}, {SLOT[3]-SLOT[2]}, v{vWA}")
    LB = 4
    def rq(n):
        wb = WB + 4 * (n % 6)
        e(f"ds_read_b64_tr_b16 {vr(wb,2)}, v{vWA} offset:{n*2048}")
        e(f"ds_read_b64_tr_b16 {vr(wb+2,2)}, v{vWA} offset:{n*2048+512}")
    for n in range(LB): rq(n)
    cm("---- K/V epilogue: pack, publish, stage own block ----")
    e(f"s_lshl_b32 s{sT1}, s{sTB}, 13"); e(f"s_lshl_b32 s{sT2}, s{sHP}, 11")
    e(f"v_and_b32 v{vT0}, 15, v0"); e(f"v_lshlrev_b32 v{vT0}, 4, v{vT0}")
    e(f"v_bfe_u32 v{vT1}, v0, 4, 1"); e(f"v_lshl_add_u32 v{vT0}, v{vT1}, 10, v{vT0}")
    e(f"v_lshrrev_b32 v{vT1}, 5, v0"); e(f"v_lshl_add_u32 v{vT0}, v{vT1}, 8, v{vT0}")
    e(f"v_add_u32 v{vT0}, 4096, v{vT0}")
    e(f"s_sub_u32 s{sT3}, 90112, s{sT1}"); e(f"s_add_u32 s{sT3}, s{sT3}, s{sT2}")
    e(f"v_add_u32 v{vT1}, s{sT3}, v{vL16}")
    e(f"v_add_u32 v{vT2}, s{sT3}, v{vT0}")
    for j in range(8): e(f"v_cvt_pk_bf16_f32 v{KD+j}, v{ACCK+2*j}, v{ACCK+2*j+1}")
    for j in range(8): e(f"v_cvt_pk_bf16_f32 v{ACCK+j}, v{ACCV+2*j}, v{ACCV+2*j+1}")
    def kvst(pol):
        e(f"buffer_store_dwordx4 {vr(KD,4)}, v{vL16}, {sr(SWS,4)}, s{sKVO} offen{pol}")
        e(f"buffer_store_dwordx4 {vr(KD+4,4)}, v{vL16}, {sr(SWS,4)}, s{sKVO} offen offset:1024{pol}")
        e(f"buffer_store_dwordx4 {vr(ACCK,4)}, v{vT0}, {sr(SWS,4)}, s{sKVO} offen{pol}")
        e(f"buffer_store_dwordx4 {vr(ACCK+4,4)}, v{vT0}, {sr(SWS,4)}, s{sKVO} offen offset:512{pol}")
    e(f"s_cmp_eq_u32 s{sLOC}, 1")
    e("s_cbranch_scc1 L_kvl")
    kvst(" sc1")
    e("s_branch L_kvd")
    lab("L_kvl")
    kvst(KVST)
    lab("L_kvd")
    cm("---- pass B: Q^T tile ----")
    for n in range(32):
        m = n + LB
        if m == 16:
            e(f"s_waitcnt vmcnt({4 + FILL})")
            e("s_barrier")
        if m < 32: rq(m)
        left = min(LB, 31 - n)
        extra = 4 if (n >= 1 and n <= LB) else 0
        cnt = 2 * left + (4 if n == 0 else 0) * 0
        if n >= 1 and n <= LB: cnt = 2 * left + 4 if n + LB > LB else cnt
        e(f"s_waitcnt lgkmcnt({min(cnt,15)})")
        wb = WB + 4 * (n % 6)
        e(f"{MF} {vr(ACCQ,16)}, {vr(wb,4)}, {vr(XF+4*n,4)}, {'0' if n == 0 else vr(ACCQ,16)}")
        if n == 0:
            e(f"ds_write_b128 v{vT1}, {vr(KD,4)}")
            e(f"ds_write_b128 v{vT1}, {vr(KD+4,4)} offset:1024")
            e(f"ds_write_b128 v{vT2}, {vr(ACCK,4)}")
            e(f"ds_write_b128 v{vT2}, {vr(ACCK+4,4)} offset:512")
    ts()
    e("s_waitcnt vmcnt(0)")
    e(f"s_cmp_eq_u32 s{sLOC}, 1")
    e("s_cbranch_scc1 L_kvf")
    flag_store(sFO, sTOK)
    e("s_branch L_kvg")
    lab("L_kvf")
    flag_store(sFO, sTOK, "")
    lab("L_kvg")
    ts()

def handoff_kv():
    if PFO:
        e(f"s_lshl_b32 s{sT0}, s{sC}, 3"); e(f"s_add_u32 s{sT0}, s{sT0}, s{sWv}")
        e(f"s_lshl_b32 s{sT0}, s{sT0}, 13"); e(f"s_add_u32 s{sT0}, s{sT0}, s{sWOO}")
        e(f"s_add_u32 s40, s{SWO}, s{sT0}"); e(f"s_addc_u32 s41, s{SWO+1}, 0")
        for j in range(8):
            for h in range(PFO): e(f"s_load_dword s54, s[40:41], {j*1024 + h*64}")
    cm("---- fetch the K/V blocks of the two previous row blocks ----")
    e(f"s_add_u32 s{sT0}, s{sI}, s{sHP}")
    e(f"s_cmp_lt_u32 s{sT0}, 2")
    e("s_cselect_b32 s%d, 1, 0" % sDONE)
    e("s_cbranch_scc1 L_nokv")
    e(f"s_sub_u32 s{sT0}, s{sT0}, 2")
    e(f"s_lshl_b32 s{sT1}, s{sB}, 3"); e(f"s_add_u32 s{sT1}, s{sT1}, s{sG}")
    e(f"s_lshl_b32 s{sT1}, s{sT1}, 4"); e(f"s_add_u32 s{sT0}, s{sT0}, s{sT1}")
    e(f"s_and_b32 s{sT1}, s{sWv}, 3")
    e(f"s_lshl_b32 s{sFO}, s{sT0}, 10"); e(f"s_lshl_b32 s{sT2}, s{sT1}, 8")
    e(f"s_add_u32 s{sFO}, s{sFO}, s{sT2}"); e(f"s_add_u32 s{sFO}, s{sFO}, {WS_KVFLAG}")
    e(f"s_lshl_b32 s{sKVO}, s{sT0}, 15"); e(f"s_lshl_b32 s{sT2}, s{sT1}, 13")
    e(f"s_add_u32 s{sKVO}, s{sKVO}, s{sT2}"); e(f"s_add_u32 s{sKVO}, s{sKVO}, {WS_KV}")
    e(f"v_and_b32 v{vT0}, 1, v0"); e(f"v_lshlrev_b32 v{vT0}, 7, v{vT0}")
    poll("L_pkv", vT0, sFO, sTOKP, 2)
    if DIAG: e(f"s_add_u32 s{sTS+2}, s{sTS}, s{sCNT}")
    e(f"s_add_u32 s{sT0}, s{sKVO}, 4096")
    for j in range(8):
        e(f"buffer_load_dwordx4 {vr(STG+4*j,4)}, v{vL16}, {sr(SWS,4)}, s{sKVO if j < 4 else sT0} offen offset:{(j%4)*1024}{KVLD}")
    lab("L_nokv")
    if WOAT == 0: dma_wo_rot(1)
    ts()
    cm("Q: scale by log2(e)/4, pack")
    e(f"s_mov_b32 s{sT0}, 0x3eb8aa3b")
    for j in range(16): e(f"v_mul_f32 v{ACCQ+j}, s{sT0}, v{ACCQ+j}")
    for j in range(8): e(f"v_cvt_pk_bf16_f32 v{QF+j}, v{ACCQ+2*j}, v{ACCQ+2*j+1}")
    for j in range(16): e(f"v_mov_b32 v{CP+j}, 0")
    for j in range(16): e(f"v_mov_b32 v{VF[0]+j}, 0x3f803f80")
    e(f"s_lshl_b32 s{sT0}, s{sTB}, 13"); e(f"s_sub_u32 s{sT0}, {90112+8192}, s{sT0}")
    e(f"s_lshl_b32 s{sT1}, s{sHP}, 11"); e(f"s_add_u32 s{sT0}, s{sT0}, s{sT1}")
    e(f"v_add_u32 v{vKA}, s{sT0}, v{vL16}")
    e(f"v_and_b32 v{vT0}, 15, v0"); e(f"v_lshlrev_b32 v{vT0}, 4, v{vT0}")
    e(f"v_lshrrev_b32 v{vT1}, 5, v0"); e(f"v_lshl_add_u32 v{vT0}, v{vT1}, 8, v{vT0}")
    e(f"s_sub_u32 s{sT0}, s{sT0}, 4096")
    e(f"v_add_u32 v{vVA}, s{sT0}, v{vT0}")
    e(f"v_add_u32 v{vVA2}, 0x10000, v{vVA}")
    e(f"s_lshl_b32 s{sT0}, s{sI}, 2"); e(f"s_add_u32 s{sT0}, s{sT0}, s{sTB}")
    e(f"s_min_u32 s{sLAST}, s{sT0}, 8")
    e(f"s_lshl_b32 s{sT1}, s{sB}, 6"); e(f"s_add_u32 s{sT0}, s{sT0}, s{sT1}")
    e(f"s_lshl_b32 s{sOLD}, s{sT0}, 15"); e(f"s_lshl_b32 s{sT1}, s{sHP}, 11")
    e(f"s_add_u32 s{sOLD}, s{sOLD}, s{sT1}"); e(f"s_add_u32 s{sOLD}, s{sOLD}, {WS_O}")
    e(f"s_lshl_b32 s{sT1}, s{sG}, 12"); e(f"s_add_u32 s{sOST}, s{sOLD}, s{sT1}")
    e(f"s_lshl_b32 s{sFO}, s{sT0}, 9"); e(f"s_lshl_b32 s{sT1}, s{sHP}, 8")
    e(f"s_add_u32 s{sFO}, s{sFO}, s{sT1}"); e(f"s_add_u32 s{sFO}, s{sFO}, {WS_OFLAG}")
    e(f"v_and_b32 v{vFLG}, 7, v0"); e(f"v_lshlrev_b32 v{vFLG}, 3, v{vFLG}")
    e("s_barrier")
    if WOAT == 1: dma_wo_rot(1)
    e(f"s_cmp_eq_u32 s{sDONE}, 1")
    e("s_cbranch_scc1 L_nokv2")
    e(f"s_lshl_b32 s{sT0}, s{sWv}, 13"); e(f"s_sub_u32 s{sT0}, 155648, s{sT0}")
    e(f"v_add_u32 v{vT0}, s{sT0}, v{vL16}")
    for j in range(8):
        e(f"s_waitcnt vmcnt({8-j})")
        e(f"ds_write_b128 v{vT0}, {vr(STG+4*j,4)} offset:{j*1024}")
    lab("L_nokv2")
    if WOLATE == 1: dma_wo_rot()
    e("s_waitcnt lgkmcnt(0)")
    e("s_barrier")
    ts()
    e(f"s_mov_b32 s{sWOC}, 1")
    if PRIO: e("s_setprio 3")

def rdK(d):
    e(f"ds_read_b128 {vr(KF[d%2],4)}, v{vKA} offset:{(d-1)*8192}")
def rdV(d):
    a, off = (vVA, d*8192) if d < 8 else (vVA2, 0)
    e(f"s_mov_b64 exec, {sr(sVMASK,2)}")
    e(f"ds_read_b128 {vr(VF[d%2],4)}, v{a} offset:{off}")
    e(f"ds_read_b128 {vr(VF[d%2]+4,4)}, v{a} offset:{off+512}")
    e("s_mov_b64 exec, -1")
def ctup(d): return CD if d == 0 else (CF if d == 8 else CP)

def oloads(st):
    e(f"s_add_u32 s{sT0}, s{sOLD}, {st*1024}")
    for gq in range(8):
        e(f"buffer_load_dwordx4 {vr(OIN[gq],4)}, v{vL16}, {sr(SWS,4)}, s{sT0} offen sc1")
        if gq < 7: e(f"s_add_u32 s{sT0}, s{sT0}, 4096")

def attention(hh):
    q = QF + 4*hh; kd = KD + 4*hh
    cm(f"---- attention, head {hh} of the wave's pair ----")
    e(f"s_mov_b32 s{sFB}, 0")
    lab(f"L_att{hh}")
    rdK(1); rdV(0)
    e(f"{MF} {vr(S[0],16)}, {vr(kd,4)}, {vr(q,4)}, {vr(CD,16)}")
    for k in range(9):
        s = S[k%2]; p = P[k%2]; pp = P[(k-1)%2]; vp = VF[(k-1)%2]
        if PRIO:
            t = 9*hh + k
            for cls, th in ((0, PTH[0]), (1, PTH[1])):
                if t in th:
                    e(f"s_cmp_eq_u32 s{sHP}, {cls}")
                    e(f"s_cbranch_scc0 L_pr{t}_{cls}")
                    e(f"s_setprio {2 - th.index(t)}")
                    lab(f"L_pr{t}_{cls}")
        e("s_waitcnt lgkmcnt(2)")
        if k < 8:
            e(f"{MF} {vr(S[(k+1)%2],16)}, {vr(KF[(k+1)%2],4)}, {vr(q,4)}, {vr(ctup(k+1),16)}")
        if k == 0: e("s_nop 9")
        for r in range(6): e(f"v_exp_f32 v{s+r}, v{s+r}")
        if k >= 1: e(f"{MF} {vr(OA,16)}, {vr(vp,4)}, {vr(pp,4)}, {'0' if k == 1 else vr(OA,16)}")
        for r in range(6, 12): e(f"v_exp_f32 v{s+r}, v{s+r}")
        if k >= 1: e(f"{MF} {vr(OA,16)}, {vr(vp+4,4)}, {vr(pp+4,4)}, {vr(OA,16)}")
        if k < 7: rdK(k+2)
        if k < 8:
            rdV(k+1)
        for r in range(12, 16): e(f"v_exp_f32 v{s+r}, v{s+r}")
        for j in range(8): e(f"v_cvt_pk_bf16_f32 v{p+j}, v{s+2*j}, v{s+2*j+1}")
        if hh == 0 and 1 <= k < 8:
            e(f"s_cmp_ge_u32 s{sWOC}, 8")
            e(f"s_cbranch_scc1 L_wo{k}")
            dma_wo_rot(1)
            e(f"s_add_u32 s{sWOC}, s{sWOC}, 1")
            lab(f"L_wo{k}")
        if hh == 1 and k == FK:
            e("s_waitcnt vmcnt(0)")
            flag_store(sOWNF, sTOK)
            e(f"s_mov_b32 s{sDONE}, 1")
        if hh == 1 and k in [x + 2 for x in PKS]:
            e(f"s_cmp_lg_u32 s{sEOK}, 1")
            e(f"s_cbranch_scc1 L_tc{k}")
            e("s_waitcnt vmcnt(0)")
            e(f"v_xor_b32 v{vT3}, s{sTOK}, v{vT3}")
            e(f"v_xor_b32 v{vT4}, s{sTOK+1}, v{vT4}")
            e(f"v_or_b32 v{vT3}, v{vT3}, v{vT4}")
            e(f"v_cmp_ne_u32 vcc, 0, v{vT3}")
            e(f"s_cbranch_vccnz L_tc{k}")
            oloads(0)
            e(f"s_mov_b32 s{sEOK}, 2")
            lab(f"L_tc{k}")
        if hh == 1 and k in PKS:
            e(f"s_cmp_eq_u32 s{sEOK}, 2")
            e(f"s_cbranch_scc1 L_tl{k}")
            e(f"buffer_load_dwordx2 {vr(vT3,2)}, v{vFLG}, {sr(SWS,4)}, s{sFO} offen sc1")
            e(f"s_mov_b32 s{sEOK}, 1")
            lab(f"L_tl{k}")
        if k < 8:
            e(f"s_cmp_eq_u32 s{sLAST}, {k}")
            e(f"s_cbranch_scc1 L_x{hh}_{k}")
    def tail(k):
        e("s_waitcnt lgkmcnt(0)")
        e("s_nop 0")
        e(f"{MF} {vr(OA,16)}, {vr(VF[k%2],4)}, {vr(P[k%2],4)}, {'0' if k == 0 else vr(OA,16)}")
        e(f"{MF} {vr(OA,16)}, {vr(VF[k%2]+4,4)}, {vr(P[k%2]+4,4)}, {vr(OA,16)}")
    tail(8)
    lab(f"L_fin{hh}")
    e("s_nop 11")
    e(f"v_mov_b32 v{vT0}, v{OA+8}")
    e(f"v_rcp_f32 v{vT1}, v{OA+8}")
    for r in range(8): e(f"v_fma_f32 v{vT0}, v{OA+r}, 0, v{vT0}")
    e(f"s_mov_b32 s{sT0}, 0x71800000")
    e(f"s_mov_b32 s{sT1}, 0x0d800000")
    e(f"v_cmp_nlt_f32 vcc, v{vT0}, s{sT0}" if False else f"v_cmp_ngt_f32 vcc, s{sT0}, v{vT0}")
    e(f"v_cmp_nlt_f32 {sr(sT2,2)}, s{sT1}, v{vT0}")
    for r in range(8): e(f"v_mul_f32 v{OA+r}, v{OA+r}, v{vT1}")
    e(f"s_or_b64 vcc, vcc, {sr(sT2,2)}")
    e(f"s_cbranch_scc1 L_fb{hh}")
    lab(f"L_ok{hh}")
    for j in range(4): e(f"v_cvt_pk_bf16_f32 v{OA+j}, v{OA+2*j}, v{OA+2*j+1}")
    e(f"buffer_store_dwordx4 {vr(OA,4)}, v{vL16}, {sr(SWS,4)}, s{sOST} offen offset:{hh*1024} sc1")
    def stubs():
        for k in range(8):
            lab(f"L_x{hh}_{k}")
            tail(k)
            e(f"s_branch L_fin{hh}")
        lab(f"L_fb{hh}")
        e(f"s_cmp_eq_u32 s{sFB}, 1")
        e(f"s_cbranch_scc1 L_fbdone{hh}")
        e(f"s_mov_b32 s{sFB}, 1")
        e(f"{MF} {vr(S[0],16)}, {vr(kd,4)}, {vr(q,4)}, {vr(CD,16)}")
        e(f"v_mov_b32 v{vT0}, 0xff7fffff")
        e(f"v_mov_b32 v{vT2}, v{vKA}")
        e(f"s_mov_b32 s{sCNT}, 0")
        lab(f"L_fbl{hh}")
        e("s_nop 15")
        for j in range(8): e(f"v_max3_f32 v{vT0}, v{S[0]+2*j}, v{S[0]+2*j+1}, v{vT0}")
        e(f"s_cmp_eq_u32 s{sCNT}, s{sLAST}")
        e(f"s_cbranch_scc1 L_fbm{hh}")
        e(f"s_add_u32 s{sCNT}, s{sCNT}, 1")
        e(f"ds_read_b128 {vr(KF[0],4)}, v{vT2}")
        e(f"v_add_u32 v{vT2}, 8192, v{vT2}")
        e("s_waitcnt lgkmcnt(0)")
        e(f"s_cmp_eq_u32 s{sCNT}, 8")
        e(f"s_cbranch_scc1 L_fbf{hh}")
        e(f"{MF} {vr(S[0],16)}, {vr(KF[0],4)}, {vr(q,4)}, 0")
        e(f"s_branch L_fbl{hh}")
        lab(f"L_fbf{hh}")
        e(f"{MF} {vr(S[0],16)}, {vr(KF[0],4)}, {vr(q,4)}, {vr(CF,16)}")
        e(f"s_branch L_fbl{hh}")
        lab(f"L_fbm{hh}")
        e(f"v_mov_b32 v{vT1}, v{vT0}")
        e("s_nop 1")
        e(f"v_permlane32_swap_b32 v{vT0}, v{vT1}")
        e("s_nop 1")
        e(f"v_max_f32 v{vT0}, v{vT0}, v{vT1}")
        for j in range(16):
            e(f"v_sub_f32 v{CD+j}, v{CD+j}, v{vT0}")
            e(f"v_sub_f32 v{CF+j}, v{CF+j}, v{vT0}")
            e(f"v_sub_f32 v{CP+j}, 0, v{vT0}")
        e("s_nop 1")
        e(f"s_branch L_att{hh}")
        lab(f"L_fbdone{hh}")
        e(f"s_branch L_ok{hh}")
    return stubs

def restore_c(tag):
    e(f"s_cmp_eq_u32 s{sFB}, 0")
    e(f"s_cbranch_scc1 {tag}")
    build_masks()
    for j in range(16): e(f"v_mov_b32 v{CP+j}, 0")
    lab(tag)

def outproj(st):
    cm(f"---- out-projection stage {st} ----")
    if st == 1: oloads(1)
    def rw(gq):
        f = WOF[gq % 2]
        for ct, a in enumerate((vWOA0, vWOA1)):
            e(f"ds_read_b64_tr_b16 {vr(f+4*ct,2)}, v{a} offset:{gq*8192+st*2048}")
            e(f"ds_read_b64_tr_b16 {vr(f+4*ct+2,2)}, v{a} offset:{gq*8192+st*2048+1024}")
    if st == 0:
        e("s_waitcnt vmcnt(0)")
        e(f"s_cmp_lg_u32 s{sEOK}, 2")
        e("s_cbranch_scc1 L_e1")
        flag_store(sOWNF, sTOK)
        lab("L_e1")
        e("s_barrier")
        ts()
    rw(0)
    for gq in range(8):
        if gq < 7: rw(gq+1)
        if st == 0: e(f"s_waitcnt lgkmcnt({4 if gq < 7 else 0})")
        else: e(f"s_waitcnt vmcnt({7-gq}) lgkmcnt({4 if gq < 7 else 0})")
        f = WOF[gq % 2]
        for ct in range(2):
            c = "0" if (st == 0 and gq == 0) else vr(OUTA[ct],16)
            e(f"{MF} {vr(OUTA[ct],16)}, {vr(f+4*ct,4)}, {vr(OIN[gq],4)}, {c}")

def phase23():
    e(f"s_mov_b32 s{sDONE}, 0")
    e(f"s_lshl_b32 s{sOWNF}, s{sG}, 3"); e(f"s_add_u32 s{sOWNF}, s{sOWNF}, s{sFO}")
    st0 = attention(0)
    lab("L_wor")
    e(f"s_cmp_ge_u32 s{sWOC}, 8")
    e("s_cbranch_scc1 L_wod")
    dma_wo_rot(1)
    e(f"s_add_u32 s{sWOC}, s{sWOC}, 1")
    e("s_branch L_wor")
    lab("L_wod")
    e(f"s_mov_b32 s{sEOK}, 0")
    ts()
    restore_c("L_rc0")
    e(f"v_add_u32 v{vKA}, 1024, v{vKA}"); e(f"v_add_u32 v{vVA}, 1024, v{vVA}"); e(f"v_add_u32 v{vVA2}, 1024, v{vVA2}")
    st1 = attention(1)
    ts()
    e(f"v_bfe_u32 v{vT0}, v0, 2, 2")
    e(f"v_lshrrev_b32 v{vT1}, 5, v0")
    e(f"v_lshl_add_u32 v{vT0}, v{vT1}, 2, v{vT0}")
    e(f"v_lshlrev_b32 v{vT0}, 7, v{vT0}")
    e(f"s_lshl_b32 s{sT0}, s{sHP}, 12")
    e(f"v_add_u32 v{vT0}, s{sT0}, v{vT0}")
    e(f"v_bfe_u32 v{vT1}, v0, 1, 1"); e(f"v_lshl_add_u32 v{vT0}, v{vT1}, 3, v{vT0}")
    e(f"v_and_b32 v{vT1}, 1, v0"); e(f"v_lshlrev_b32 v{vT1}, 1, v{vT1}")
    e(f"v_bfe_u32 v{vT2}, v0, 4, 1"); e(f"v_add_u32 v{vT1}, v{vT1}, v{vT2}")
    e(f"v_bfe_u32 v{vT2}, v0, 3, 1"); e(f"v_lshlrev_b32 v{vT2}, 2, v{vT2}")
    e(f"v_xor_b32 v{vT1}, v{vT1}, v{vT2}")
    e(f"v_lshl_add_u32 v{vWOA0}, v{vT1}, 4, v{vT0}")
    e(f"v_xor_b32 v{vWOA1}, 64, v{vWOA0}")
    e(f"s_cmp_eq_u32 s{sDONE}, 1")
    e("s_cbranch_scc1 L_f0done")
    e("s_waitcnt vmcnt(1)")
    flag_store(sOWNF, sTOK)
    lab("L_f0done")
    e(f"s_add_u32 s{sOWNF}, s{sOWNF}, 128")
    e(f"s_cmp_eq_u32 s{sEOK}, 2")
    e("s_cbranch_scc1 L_e0")
    poll("L_po0", vFLG, sFO, sTOK, 2)
    flag_store(sOWNF, sTOK)
    oloads(0)
    lab("L_e0")
    ts()
    outproj(0)
    e(f"s_or_b32 s{sT0}, s{sG}, s{sWv}")
    e(f"s_cmp_lg_u32 s{sT0}, 0")
    e("s_cbranch_scc1 L_noep")
    e(f"s_lshl_b32 s{sT0}, s{sB}, 5"); e(f"s_add_u32 s{sT0}, s{sT0}, s{sI}"); e(f"s_lshl_b32 s{sT0}, s{sT0}, 2")
    e(f"s_cmp_eq_u32 s{sI}, 15")
    e(f"s_cselect_b32 s{sT1}, 7, 1")
    e(f"v_mov_b32 v{vT0}, s{sEP}")
    e(f"v_writelane_b32 v{vT0}, s{sEP+1}, 1")
    e(f"v_writelane_b32 v{vT0}, s{sEP+2}, 2")
    e(f"s_mov_b32 s{sT2}, 1664525")
    e(f"v_mul_lo_u32 v{vT0}, v{vT0}, s{sT2}")
    e(f"v_add_u32 v{vT0}, 1013904223, v{vT0}")
    e(f"v_lshlrev_b32 v{vT1}, 2, v0")
    e(f"s_mov_b32 exec_lo, s{sT1}"); e("s_mov_b32 exec_hi, 0")
    e(f"buffer_store_dword v{vT0}, v{vT1}, {sr(SWS,4)}, s{sT0} offen")
    e("s_mov_b64 exec, -1")
    lab("L_noep")
    e(f"s_add_u32 s{sFO}, s{sFO}, 128")
    poll("L_po1", vFLG, sFO, sTOK, 2)
    ts()
    outproj(1)
    cm("---- pairwise reduction over the two head-pair waves, pack, store ----")
    e(f"s_lshl_b32 s{sT0}, s{sWv}, 12"); e(f"s_add_u32 s{sT0}, s{sT0}, 65536")
    e(f"v_add_u32 v{vT0}, s{sT0}, v{vL16}")
    e(f"s_sub_u32 s{sT1}, 7, s{sWv}")
    e(f"s_lshl_b32 s{sT1}, s{sT1}, 12"); e(f"s_add_u32 s{sT1}, s{sT1}, 65536")
    e(f"v_add_u32 v{vT1}, s{sT1}, v{vL16}")
    e(f"s_lshl_b32 s{sT0}, s{sI}, 2"); e(f"s_add_u32 s{sT0}, s{sT0}, s{sTB}"); e(f"s_lshl_b32 s{sT0}, s{sT0}, 16")
    e(f"s_lshl_b32 s{sT1}, s{sB}, 10"); e(f"s_add_u32 s{sT0}, s{sT0}, s{sT1}")
    e(f"s_lshl_b32 s{sT1}, s{sG}, 7"); e(f"s_add_u32 s{sT0}, s{sT0}, s{sT1}")
    e(f"s_lshl_b32 s{sT1}, s{sHP}, 6"); e(f"s_add_u32 s{sT0}, s{sT0}, s{sT1}")
    e(f"v_and_b32 v{vT2}, 31, v0"); e(f"v_lshlrev_b32 v{vT2}, 11, v{vT2}")
    e(f"v_lshrrev_b32 v{vT3}, 5, v0"); e(f"v_lshl_add_u32 v{vT2}, v{vT3}, 5, v{vT2}")
    e(f"s_cmp_eq_u32 s{sHP}, 0")
    e("s_cbranch_scc1 L_red0")
    for keep in (1, 0):
        if keep == 0: lab("L_red0")
        give = OUTA[1-keep]; mine = OUTA[keep]
        e("s_nop 3")
        for j in range(4): e(f"ds_write_b128 v{vT0}, {vr(give+4*j,4)} offset:{j*1024}")
        e("s_waitcnt lgkmcnt(0)")
        e("s_barrier")
        for j in range(4): e(f"ds_read_b128 {vr(S[0]+4*j,4)}, v{vT1} offset:{j*1024}")
        for j in range(4):
            e(f"s_waitcnt lgkmcnt({3-j})")
            for r in range(4): e(f"v_add_f32 v{mine+4*j+r}, v{mine+4*j+r}, v{S[0]+4*j+r}")
        for j in range(8): e(f"v_cvt_pk_bf16_f32 v{mine+j}, v{mine+2*j}, v{mine+2*j+1}")
        e(f"buffer_store_dwordx4 {vr(mine,4)}, v{vT2}, {sr(SOUT,4)}, s{sT0} offen")
        e(f"buffer_store_dwordx4 {vr(mine+4,4)}, v{vT2}, {sr(SOUT,4)}, s{sT0} offen offset:16")
        if keep == 1: e("s_branch L_stored")
    lab("L_stored")
    if DIAG:
        e("s_waitcnt vmcnt(0)")
        ts()
        e(f"s_memrealtime {sr(sT2,2)}"); e("s_waitcnt lgkmcnt(0)"); e(f"s_mov_b32 s{sTS+21}, s{sT2}")
        for n in list(range(tsn[0])) + [20, 21]:
            e(f"v_writelane_b32 v{vT0}, s{sTS+n}, {n}")
        if "--dbg" in sys.argv:
            e("s_mov_b64 s[4:5], s[50:51]"); e("s_mov_b32 s6, 256"); e("s_mov_b32 s7, 0x20000")
            e(f"s_not_b32 s{sT1}, s{sTS+20}")
            e(f"v_mov_b32 v{vT2}, s{sTS+21}"); e(f"v_writelane_b32 v{vT2}, s{sT1}, 1")
            sel = [2, 3, 7, 8, 9, 10, 11, 12, 13, 14, 15, 16, 17]
            for j, n in enumerate(sel):
                e(f"s_sub_u32 s{sT1}, s{sTS+n}, s{sTS}")
                e(f"v_writelane_b32 v{vT2}, s{sT1}, {2+j}")
            e(f"s_lshl_b32 s{sT1}, s2, 3"); e(f"s_add_u32 s{sT1}, s{sT1}, s{sWv}")
            e(f"s_cmp_eq_u32 s{sT1}, {opt('dbgw', '805')}")
            e(f"s_cselect_b32 s{sT1}, 0x7fff, 3")
            e(f"v_lshlrev_b32 v{vT1}, 2, v0")
            e(f"s_mov_b32 exec_lo, s{sT1}"); e("s_mov_b32 exec_hi, 0")
            e(f"buffer_atomic_umax v{vT2}, v{vT1}, s[4:7], 0 offen")
            e("s_mov_b64 exec, -1")
        e(f"s_lshl_b32 s{sT0}, s2, 3"); e(f"s_add_u32 s{sT0}, s{sT0}, s{sWv}"); e(f"s_lshl_b32 s{sT0}, s{sT0}, 7")
        e(f"s_add_u32 s{sT0}, s{sT0}, {WS_DIAG}")
        e(f"v_lshlrev_b32 v{vT1}, 2, v0")
        e("s_mov_b32 exec_lo, -1"); e("s_mov_b32 exec_hi, 0")
        e(f"buffer_store_dword v{vT0}, v{vT1}, {sr(SWS,4)}, s{sT0} offen")
    lab("L_end")
    e("s_endpgm")
    st0(); st1()
    lab("L_last")
    e("s_endpgm")

hdr = open("cdna_kernels/%s.s.ref" % NAME).read().split("\n")
out = [l for l in hdr if l.startswith(";") and "@launch" not in l and "Override" not in l and "grid=ceil" not in l]
out.append("; @launch grid=(256,1,1) block=(512,1,1) lds=163840")
out += ['.amdgcn_target "amdgcn-amd-amdhsa--gfx950"', ".text", f".globl {NAME}_kernel", ".p2align 8",
        f".type {NAME}_kernel,@function", f"{NAME}_kernel:"]
prologue(); phase1(); handoff_kv(); phase23()
out += L
out += ['.section .rodata,"a"', ".p2align 6", f".amdhsa_kernel {NAME}_kernel",
        "  .amdhsa_next_free_vgpr 256", "  .amdhsa_next_free_sgpr 102", "  .amdhsa_accum_offset 256",
        "  .amdhsa_group_segment_fixed_size 0", "  .amdhsa_kernarg_size 72", "  .amdhsa_user_sgpr_count 2",
        "  .amdhsa_user_sgpr_kernarg_segment_ptr 1", "  .amdhsa_system_sgpr_workgroup_id_x 1", ".end_amdhsa_kernel"]
print("\n".join(out))
```

```python
import sys
DIAG = "--diag" in sys.argv
def opt(name, dflt):
    for a in sys.argv[1:]:
        if a.startswith("--" + name + "="): return a.split("=", 1)[1]
    return dflt
ROT = opt("rot", "i2g")
PRE = 2
NT = int(opt("nt", "0"))
NAME = "concat_heads__sliding_block__sliding_block__prompt"
L = []
def e(s=""): L.append("    " + s)
def lab(s): L.append(s + ":")
def cm(s): L.append("    ; " + s)
def vr(a, n=1): return f"v{a}" if n == 1 else f"v[{a}:{a+n-1}]"
def sr(a, n=1): return f"s{a}" if n == 1 else f"s[{a}:{a+n-1}]"

WS_EPOCH = 0x0
WS_ANN = 0x1000
WS_KVFLAG = 0x40000
WS_OFLAG = 0x10000
WS_KV = 0x200000
WS_O = 0x1000000
WS_DIAG = 0x1800000
WS_SIZE = 0x2000000
SX, SW, SWO, SOUT, SWS = 4, 8, 12, 16, 20
sB, sI, sG, sWv, sTB, sHP = 24, 25, 26, 27, 28, 29
sTOK, sTOKP = 30, 32
sXO, sWKO, sWVO, sWQO, sWOO = 34, 35, 54, 55, 56
sM2K, sM1K = 57, 58
sLAST, sFB, sCNT, sT0, sT1, sT2, sT3 = 59, 60, 61, 62, 63, 64, 65
sEP = 68
sVMASK = 72
sKVO, sOST, sOLD, sFO = 74, 75, 76, 77
sDONE = 78
sOWNF = 79
sTM = 66
sC = 3
sTS = 80
vX0, vX1, vW, vWO = 1, 2, 3, 4
vXA = 5
vWA = 9
vL16 = 10
vT0, vT1, vT2, vT3, vT4 = 11, 12, 13, 14, 15
ACCK, ACCV, ACCQ = 16, 32, 48
WB = 64
CD, CF = 88, 104
KD = 120
XF = 128
QF = 64
CP = 128; S = [144, 160]; P = [176, 184]; KF = [192, 196]; VF = [200, 208]; OA = 216
OUTA = [16, 32]
OIN = [48, 52, 56, 60, 72, 76, 80, 84]
WOF = [232, 240]
vKA, vVA, vVA2, vWOA0, vWOA1, vFLG = 248, 249, 250, 251, 252, 253
vVW = 254
STG = 16

SLOT = [0, 32768, 65536, 98304, 131072]
tsn = [0]
ndma = [0]
TSDMA = "--tsdma" in sys.argv
FLAGSTEP = int(opt("fs", "31"))
EARLY = int(opt("early", "1"))
TOUCH = int(opt("touch", "1"))
FK = int(opt("fk", "2"))
PKS = [int(x) for x in opt("pks", "4,6").split(",")]
LOCAL = int(opt("local", "0"))
PFQ = int(opt("pfq", "0"))
PFO = int(opt("pfo", "0"))
FSC1 = int(opt("fsc1", "0"))
KVLD = {"sc1": " sc1", "plain": "", "nt": " nt", "sc0": " sc0"}[opt("kvld", "sc1")]
KVST = {"plain": "", "nt": " nt", "sc0": " sc0"}[opt("kvst", "plain")]
FILL = int(opt("fill", "0"))
FILLP = {"nt": " nt", "plain": ""}[opt("fillp", "nt")]
WOAT = int(opt("woat", "1"))
PRIO = int(opt("prio", "1"))
PTH = [[int(x) for x in s_.split(",")] for s_ in opt("pth", "4,9,14/6,11,16").split("/")]
OUTP = {"plain": "", "nt": " nt", "sc1": " sc1", "sc01": " sc0 sc1"}[opt("outp", "plain")]
CPF = int(opt("cpf", "0"))
WOLATE = int(opt("wolate", "2"))
def ts():
    if DIAG:
        n = tsn[0]; tsn[0] += 1
        e(f"s_memtime {sr(sTM,2)}"); e("s_waitcnt lgkmcnt(0)"); e(f"s_mov_b32 s{sTS+n}, s{sTM}")

def dma(srd, voff, soff, ldsbase_s, ldsimm, pol=""):
    e(f"s_add_u32 m0, s{ldsbase_s}, {ldsimm}")
    e("s_nop 0")
    e(f"buffer_load_dwordx4 v{voff}, {sr(srd,4)}, s{soff} offen {pol}lds")
    ndma[0] += 1
    if TSDMA and ndma[0] in (1, 2, 3, 4, 6, 8): ts()

def next_c():
    e(f"s_add_u32 s{sC}, s{sC}, 1")
    e(f"s_and_b32 s{sC}, s{sC}, 7")
sEN1, sEN2, sXCC, sLOC, sPID, sANN = 36, 37, 38, 44, 45, 46
sWOC, sEOK = 98, 99
sCX, sCW = 98, 99
def dma_piece(slot, j, px="", pw=""):
    if j == 0:
        e(f"s_lshl_b32 s{sCX}, s{sC}, 7")
        e(f"s_mul_i32 s{sCW}, s{sC}, {64*3072}")
        e(f"s_add_u32 s{sCX}, s{sCX}, s{sXO}")
        e(f"s_add_u32 s{sCW}, s{sCW}, s{sWKO}")
        dma(SX, vX0, sCX, sM2K, slot, px)
    elif j == 1: dma(SX, vX1, sCX, sM2K, slot + 1024, px)
    elif j == 2: dma(SW, vW, sCW, sM1K, slot + 16384, pw)
    else:
        e(f"s_add_u32 s{sCW}, s{sCW}, 1024")
        dma(SW, vW, sCW, sM1K, slot + 24576, pw)
        next_c()
def dma_chunk(slot, px="", pw=""):
    for j in range(4): dma_piece(slot, j, px, pw)
def dma_wq_piece(q):
    e(f"s_mul_i32 s{sCW}, s{sC}, {64*3072}")
    e(f"s_add_u32 s{sCW}, s{sCW}, s{sWQO}")
    dma(SW, vW, sCW, sM1K, SLOT[3] + q*8192)
    next_c()
def dma_wo_rot(cnt=8):
    for q in range(cnt):
        e(f"s_lshl_b32 s{sT0}, s{sC}, 13")
        e(f"s_lshl_b32 s{sT1}, s{sC}, 16")
        e(f"s_add_u32 s{sT0}, s{sT0}, s{sM1K}")
        e(f"s_add_u32 s{sT1}, s{sT1}, s{sWOO}")
        dma(SWO, vWO, sT1, sT0, 0)
        next_c()
def dma_wo(half):
    if WOLATE: return
    for q in range(4):
        dma(SWO, vWO, sWOO, sM1K, (half*4+q)*8192)
        e(f"s_add_u32 s{sWOO}, s{sWOO}, {64*1024}")

def lcg(dst, src):
    e(f"s_mul_i32 s{dst}, s{src}, 1664525")
    e(f"s_add_u32 s{dst}, s{dst}, 1013904223")
    e(f"s_xor_b32 s{dst+1}, s{dst}, 0x9e3779b9")

def tokens(wait):
    if wait: e("s_waitcnt lgkmcnt(0)")
    lcg(sTOK, sEP + 2)
    e(f"s_cmp_lt_u32 s{sWv}, 4")
    e(f"s_cselect_b32 s{sT0}, s{sEP}, s{sEP+1}")
    lcg(sTOKP, sT0)

def build_masks():
    e(f"v_and_b32 v{vT0}, 31, v0")
    e(f"v_bfe_u32 v{vT1}, v0, 5, 1")
    e(f"v_lshlrev_b32 v{vT1}, 2, v{vT1}")
    e(f"v_sub_u32 v{vT0}, v{vT0}, v{vT1}")
    e(f"v_mov_b32 v{vT1}, 0xf149f2ca")
    e(f"v_mov_b32 v{vT2}, 0")
    for r in range(16):
        kk = 8*(r//4) + r % 4
        e(f"v_cmp_le_i32 vcc, {kk}, v{vT0}")
        e("s_nop 1")
        e(f"v_cndmask_b32 v{CD+r}, v{vT1}, v{vT2}, vcc")
        e(f"v_cndmask_b32 v{CF+r}, v{vT2}, v{vT1}, vcc")

def poll(name, voff, soff, tok, nwords):
    e(f"s_mov_b32 s{sCNT}, 0")
    lab(name)
    e(f"buffer_load_dwordx{nwords} {vr(vT0 + 1, nwords)}, v{voff}, {sr(SWS,4)}, s{soff} offen sc1")
    e(f"s_add_u32 s{sCNT}, s{sCNT}, 1")
    e("s_waitcnt vmcnt(0)")
    e(f"v_xor_b32 v{vT0+1}, s{tok}, v{vT0+1}")
    e(f"v_xor_b32 v{vT0+2}, s{tok+1}, v{vT0+2}")
    if nwords == 4:
        e(f"v_xor_b32 v{vT0+3}, s{tok}, v{vT0+3}")
        e(f"v_xor_b32 v{vT0+4}, s{tok+1}, v{vT0+4}")
        e(f"v_or3_b32 v{vT0+1}, v{vT0+1}, v{vT0+3}, v{vT0+4}")
    e(f"v_or_b32 v{vT0+1}, v{vT0+1}, v{vT0+2}")
    e(f"v_cmp_ne_u32 vcc, 0, v{vT0+1}")
    e(f"s_cbranch_vccz {name}_ok")
    e(f"s_cmp_lt_u32 s{sCNT}, 0x400000")
    e(f"s_cbranch_scc1 {name}")
    lab(name + "_ok")

def flag_store(soff, tok, pol=" sc1"):
    e(f"v_mov_b32 v{vT0+1}, s{tok}")
    e(f"v_mov_b32 v{vT0+2}, s{tok+1}")
    e(f"v_mov_b32 v{vT0}, 0")
    e("s_mov_b64 exec, 1")
    e(f"buffer_store_dwordx2 {vr(vT0+1,2)}, v{vT0}, {sr(SWS,4)}, s{soff} offen{pol}")
    e("s_mov_b64 exec, -1")

MF = "v_mfma_f32_32x32x16_bf16"

def prologue():
    e("s_cmp_ge_u32 s2, 256")
    e("s_cbranch_scc1 L_end")
    e("s_load_dwordx16 s[36:51], s[0:1], 0")
    e("s_load_dwordx2 s[52:53], s[0:1], 64")
    if DIAG:
        e(f"s_memrealtime {sr(sT2,2)}"); e("s_waitcnt lgkmcnt(0)"); e(f"s_mov_b32 s{sTS+20}, s{sT2}")
    ts()
    e(f"v_lshrrev_b32 v{vT0}, 6, v0")
    if CPF:
        e(f"s_getpc_b64 {sr(sT2,2)}")
        lab("L_pc")
        e(f"v_lshlrev_b32 v{vT1}, 6, v0")
        e(f"v_min_u32 v{vT1}, L_last-L_pc, v{vT1}")
        e(f"global_load_dword v255, v{vT1}, {sr(sT2,2)}")
    e(f"s_and_b32 s{sT0}, s2, 7")
    e(f"v_readfirstlane_b32 s{sWv}, v{vT0}")
    e(f"s_lshr_b32 s{sT1}, s2, 3")
    e(f"s_lshr_b32 s{sB}, s{sT0}, 2")
    e(f"s_bfe_u32 s{sI}, s{sT0}, 0x10001")
    e(f"s_lshl_b32 s{sI}, s{sI}, 3")
    e(f"s_lshr_b32 s{sT2}, s{sT1}, 2")
    e(f"s_add_u32 s{sI}, s{sI}, s{sT2}")
    e(f"s_and_b32 s{sG}, s{sT0}, 1")
    e(f"s_lshl_b32 s{sG}, s{sG}, 2")
    e(f"s_and_b32 s{sT2}, s{sT1}, 3")
    e(f"s_add_u32 s{sG}, s{sG}, s{sT2}")
    e("v_and_b32 v0, 63, v0")
    e(f"s_lshr_b32 s{sHP}, s{sWv}, 2")
    e(f"s_sub_u32 s{sT2}, 7, s{sWv}")
    e(f"s_cmp_lt_u32 s{sWv}, 4")
    e(f"s_cselect_b32 s{sTB}, s{sWv}, s{sT2}")
    e(f"s_lshl_b32 s{sM2K}, s{sWv}, 11")
    e(f"s_lshl_b32 s{sM1K}, s{sWv}, 10")
    e(f"v_lshrrev_b32 v{vT0}, 3, v0")
    e(f"v_and_b32 v{vT1}, 7, v0")
    e(f"v_lshrrev_b32 v{vT2}, 4, v0")
    e(f"v_xor_b32 v{vT3}, v{vT1}, v{vT2}")
    e(f"s_lshl_b32 s{sT2}, s{sWv}, 4")
    e(f"v_add_u32 v{vT4}, s{sT2}, v{vT0}")
    e(f"v_lshlrev_b32 v{vT4}, 10, v{vT4}")
    e(f"v_lshl_add_u32 v{vX0}, v{vT3}, 4, v{vT4}")
    e(f"v_xor_b32 v{vT3}, 4, v{vT3}")
    e(f"v_lshl_add_u32 v{vX1}, v{vT3}, 4, v{vT4}")
    e(f"v_add_u32 v{vX1}, 8192, v{vX1}")
    e(f"v_and_b32 v{vT2}, 1, v{vT2}")
    e(f"v_lshlrev_b32 v{vT2}, 2, v{vT2}")
    e(f"v_xor_b32 v{vT1}, v{vT1}, v{vT2}")
    e(f"s_lshl_b32 s{sT2}, s{sWv}, 3")
    e(f"v_add_u32 v{vT0}, s{sT2}, v{vT0}")
    e(f"v_mul_u32_u24 v{vT4}, 3072, v{vT0}")
    e(f"v_lshl_add_u32 v{vW}, v{vT1}, 4, v{vT4}")
    e(f"v_lshlrev_b32 v{vT4}, 10, v{vT0}")
    e(f"v_lshl_add_u32 v{vWO}, v{vT1}, 4, v{vT4}")
    e(f"s_lshl_b32 s{sXO}, s{sI}, 17")
    e(f"s_lshl_b32 s{sWQO}, s{sG}, 7")
    e(f"s_add_u32 s{sWKO}, s{sWQO}, 1024")
    e(f"s_mov_b32 s{sWOO}, s{sWQO}")
    if ROT == "ig": e(f"s_add_u32 s{sC}, s{sI}, s{sG}")
    elif ROT == "i2g":
        e(f"s_lshl_b32 s{sC}, s{sG}, 1"); e(f"s_add_u32 s{sC}, s{sC}, s{sI}")
    elif ROT == "i2gh":
        e(f"s_lshl_b32 s{sC}, s{sG}, 1"); e(f"s_add_u32 s{sC}, s{sC}, s{sI}")
        e(f"s_lshr_b32 s{sT2}, s{sG}, 2"); e(f"s_add_u32 s{sC}, s{sC}, s{sT2}")
    else: e(f"s_mov_b32 s{sC}, 0")
    e(f"s_and_b32 s{sC}, s{sC}, 7")
    e("s_waitcnt lgkmcnt(0)")
    ts()
    e(f"s_cmp_eq_u32 s{sB}, 0")
    e(f"s_cselect_b64 {sr(SX,2)}, s[36:37], s[42:43]")
    e(f"s_cselect_b64 {sr(SW,2)}, s[38:39], s[44:45]")
    e(f"s_cselect_b64 {sr(SWO,2)}, s[40:41], s[46:47]")
    e(f"s_mov_b32 s{SX+2}, {2048*512*2}"); e(f"s_mov_b32 s{SX+3}, 0x20000")
    e(f"s_mov_b32 s{SW+2}, {512*1536*2}"); e(f"s_mov_b32 s{SW+3}, 0x20000")
    def pre_chunk(c): dma_chunk(SLOT[c], "nt " if c < NT else "", "nt " if (c == 0 and NT) else "")
    for c in range(1 if EARLY else PRE): pre_chunk(c)
    ts()
    e(f"s_mov_b32 s{SWO+2}, {512*512*2}"); e(f"s_mov_b32 s{SWO+3}, 0x20000")
    e(f"s_mov_b64 {sr(SOUT,2)}, s[48:49]"); e(f"s_mov_b32 s{SOUT+2}, {2048*1024*2}"); e(f"s_mov_b32 s{SOUT+3}, 0x20000")
    e(f"s_mov_b64 {sr(SWS,2)}, s[52:53]"); e(f"s_mov_b32 s{SWS+2}, {WS_SIZE}"); e(f"s_mov_b32 s{SWS+3}, 0x20000")
    e(f"s_lshl_b32 s{sT0}, s{sB}, 5")
    e(f"s_add_u32 s{sT0}, s{sT0}, s{sI}")
    e(f"s_lshl_b32 s{sT0}, s{sT0}, 2")
    e(f"s_load_dword s{sEP}, s[52:53], s{sT0}")
    e(f"s_add_u32 s{sT1}, s{sT0}, 4")
    e(f"s_load_dword s{sEP+1}, s[52:53], s{sT1}")
    e(f"s_add_u32 s{sT1}, s{sT0}, 8")
    e(f"s_load_dword s{sEP+2}, s[52:53], s{sT1}")
    if LOCAL:
        e(f"s_add_u32 s{sT1}, s{sT0}, 12")
        e(f"s_load_dword s{sEN1}, s[52:53], s{sT1}")
        e(f"s_add_u32 s{sT1}, s{sT0}, 16")
        e(f"s_load_dword s{sEN2}, s[52:53], s{sT1}")
        e(f"s_getreg_b32 s{sXCC}, hwreg(HW_REG_XCC_ID, 0, 4)")
    e(f"v_and_b32 v{vT0}, 31, v0")
    e(f"v_lshrrev_b32 v{vT1}, 5, v0")
    e(f"v_bfe_u32 v{vT2}, v0, 1, 3")
    e(f"s_lshl_b32 s{sT2}, s{sTB}, 12")
    e(f"v_lshlrev_b32 v{vT3}, 7, v{vT0}")
    e(f"v_add_u32 v{vT3}, s{sT2}, v{vT3}")
    for s in range(4):
        e(f"v_add_u32 v{vT4}, {2*s}, v{vT1}")
        e(f"v_xor_b32 v{vT4}, v{vT4}, v{vT2}")
        e(f"v_lshl_add_u32 v{vXA+s}, v{vT4}, 4, v{vT3}")
    e(f"v_bfe_u32 v{vT0}, v0, 2, 2")
    e(f"v_lshl_add_u32 v{vT2}, v{vT1}, 3, v{vT0}")
    e(f"v_lshlrev_b32 v{vT2}, 7, v{vT2}")
    e(f"v_bfe_u32 v{vT3}, v0, 4, 1")
    e(f"v_lshlrev_b32 v{vT3}, 1, v{vT3}")
    e(f"v_bfe_u32 v{vT4}, v0, 1, 1")
    e(f"v_add_u32 v{vT3}, v{vT3}, v{vT4}")
    e(f"s_lshl_b32 s{sT2}, s{sHP}, 2")
    e(f"v_add_u32 v{vT3}, s{sT2}, v{vT3}")
    e(f"v_bfe_u32 v{vT4}, v0, 3, 1")
    e(f"v_lshlrev_b32 v{vT4}, 2, v{vT4}")
    e(f"v_xor_b32 v{vT3}, v{vT3}, v{vT4}")
    e(f"v_lshl_add_u32 v{vT2}, v{vT3}, 4, v{vT2}")
    e(f"v_and_b32 v{vT3}, 1, v0")
    e(f"v_lshl_add_u32 v{vWA}, v{vT3}, 3, v{vT2}")
    e(f"v_lshlrev_b32 v{vL16}, 4, v0")
    build_masks()
    e(f"s_mov_b32 s{sVMASK}, 0x0000ffff"); e(f"s_mov_b32 s{sVMASK+1}, 0x0000ffff")
    if LOCAL: tokens(True)
    e(f"s_lshl_b32 s{sT0}, s{sB}, 3"); e(f"s_add_u32 s{sT0}, s{sT0}, s{sG}")
    e(f"s_lshl_b32 s{sT0}, s{sT0}, 4"); e(f"s_add_u32 s{sPID}, s{sT0}, s{sI}")
    e(f"s_lshl_b32 s{sANN}, s{sPID}, 3"); e(f"s_add_u32 s{sANN}, s{sANN}, {WS_ANN}")
    if LOCAL:
        e(f"s_cmp_lg_u32 s{sWv}, 0")
        e("s_cbranch_scc1 L_noann")
        e(f"s_add_u32 s{sT2}, s{sTOK}, s{sXCC}"); e(f"s_mov_b32 s{sT3}, s{sTOK+1}")
        flag_store(sANN, sT2)
        lab("L_noann")
    if TOUCH:
        e(f"s_lshl_b32 s{sT0}, s{sPID}, 15"); e(f"s_add_u32 s{sT0}, s{sT0}, {WS_KV}")
        e(f"v_mov_b32 v{vT0}, s{sT0}")
        e(f"s_lshl_b32 s{sT0}, s{sB}, 4"); e(f"s_add_u32 s{sT0}, s{sT0}, s{sI}")
        e(f"s_lshl_b32 s{sT0}, s{sT0}, 2"); e(f"s_add_u32 s{sT0}, s{sT0}, s{sTB}")
        e(f"s_lshl_b32 s{sT1}, s{sT0}, 15"); e(f"s_add_u32 s{sT1}, s{sT1}, {WS_O}")
        e(f"v_writelane_b32 v{vT0}, s{sT1}, 1")
        e(f"s_and_b32 s{sT2}, s{sT0}, 63"); e(f"s_lshl_b32 s{sT2}, s{sT2}, 16")
        e(f"s_lshl_b32 s{sT0}, s{sT0}, 1"); e(f"s_add_u32 s{sT0}, s{sT0}, s{sHP}")
        e(f"s_lshl_b32 s{sT0}, s{sT0}, 8"); e(f"s_add_u32 s{sT0}, s{sT0}, {WS_OFLAG}")
        e(f"v_writelane_b32 v{vT0}, s{sT0}, 2")
        e(f"s_add_u32 s{sT0}, s{sT0}, 128")
        e(f"v_writelane_b32 v{vT0}, s{sT0}, 3")
        e(f"s_lshl_b32 s{sT0}, s{sPID}, 2"); e(f"s_add_u32 s{sT0}, s{sT0}, s{sWv}")
        e(f"s_lshl_b32 s{sT0}, s{sT0}, 8"); e(f"s_add_u32 s{sT0}, s{sT0}, {WS_KVFLAG - 2048}")
        e(f"v_writelane_b32 v{vT0}, s{sT0}, 4")
        e(f"s_add_u32 s{sT0}, s{sT0}, 128")
        e(f"v_writelane_b32 v{vT0}, s{sT0}, 5")
        e("s_mov_b64 exec, 0x3f")
        e(f"buffer_load_dword v254, v{vT0}, {sr(SWS,4)}, 0 offen sc1")
        e("s_mov_b64 exec, 1")
        e(f"buffer_load_dword v253, off, {sr(SOUT,4)}, s{sT2}")
        e(f"buffer_load_dword v252, off, {sr(SWO,4)}, s{sWOO}")
        e("s_mov_b64 exec, -1")
    if EARLY:
        for c in range(1, PRE): pre_chunk(c)
    if PFQ:
        e(f"s_add_u32 s{sT0}, s{sC}, 6"); e(f"s_and_b32 s{sT0}, s{sT0}, 7")
        e(f"s_lshl_b32 s{sT0}, s{sT0}, 3"); e(f"s_add_u32 s{sT0}, s{sT0}, s{sWv}")
        e(f"s_mul_i32 s{sT0}, s{sT0}, {8*3072}"); e(f"s_add_u32 s{sT0}, s{sT0}, s{sWQO}")
        e(f"s_add_u32 s40, s{SW}, s{sT0}"); e(f"s_addc_u32 s41, s{SW+1}, 0")
        for j in range(8):
            for h in range(PFQ): e(f"s_load_dword s54, s[40:41], {j*3072 + h*64}")

LA = 2
def p1_reads(n):
    s = n % 4
    wb = WB + 8 * (n % 3)
    e(f"ds_read_b128 {vr(XF+4*n,4)}, v{vXA+s}")
    for j, base in enumerate((16384, 24576)):
        e(f"ds_read_b64_tr_b16 {vr(wb+4*j,2)}, v{vWA} offset:{base+s*2048}")
        e(f"ds_read_b64_tr_b16 {vr(wb+4*j+2,2)}, v{vWA} offset:{base+s*2048+512}")
def p1_boundary(c):
    vm = 4
    e(f"s_waitcnt vmcnt({vm})")
    e("s_barrier")
    if c in ((0,) if TSDMA else (0, 2, 4, 6)): ts()
    if c >= 1:
        d = SLOT[c % 5] - SLOT[(c-1) % 5]
        for s in range(4): e(f"v_add_u32 v{vXA+s}, {d & 0xffffffff}, v{vXA+s}")
        e(f"v_add_u32 v{vWA}, {d & 0xffffffff}, v{vWA}")
def p1_refill(n):
    if n < 2:
        dma_piece(SLOT[2], 2*n); dma_piece(SLOT[2], 2*n+1)
    elif n < 22:
        c = (n + 2) // 4 + 2
        dma_piece(SLOT[c % 5], (n + 2) % 4)
    elif n < 30:
        dma_wq_piece(n - 22)

def phase1():
    cm("---- pass A: K^T and V tiles ----")
    p1_boundary(0)
    for n in range(LA): p1_reads(n)
    for n in range(32):
        m = n + LA
        if m < 32:
            if m % 4 == 0: p1_boundary(m // 4)
            p1_reads(m)
            out = 5 * LA
        else:
            out = 5 * (31 - n)
        e(f"s_waitcnt lgkmcnt({out})")
        wb = WB + 8 * (n % 3)
        c0 = "0" if n == 0 else None
        e(f"{MF} {vr(ACCK,16)}, {vr(wb,4)}, {vr(XF+4*n,4)}, {c0 or vr(ACCK,16)}")
        e(f"{MF} {vr(ACCV,16)}, {vr(XF+4*n,4)}, {vr(wb+4,4)}, {c0 or vr(ACCV,16)}")
        p1_refill(n)
        if n == 21 and LOCAL:
            e(f"v_lshlrev_b32 v{vT0}, 3, v0")
            e(f"s_mov_b64 exec, 3")
            e(f"buffer_load_dwordx2 {vr(vT3,2)}, v{vT0}, {sr(SWS,4)}, s{sANN} offen offset:8 sc1")
            e(f"s_mov_b64 exec, -1")
        if n == 28:
            e(f"s_lshl_b32 s{sFO}, s{sPID}, 10")
            e(f"s_lshl_b32 s{sT1}, s{sTB}, 8"); e(f"s_add_u32 s{sFO}, s{sFO}, s{sT1}")
            e(f"s_lshl_b32 s{sT1}, s{sHP}, 7"); e(f"s_add_u32 s{sFO}, s{sFO}, s{sT1}")
            e(f"s_add_u32 s{sFO}, s{sFO}, {WS_KVFLAG}")
            e(f"s_lshl_b32 s{sKVO}, s{sPID}, 15")
            e(f"s_lshl_b32 s{sT1}, s{sTB}, 13"); e(f"s_add_u32 s{sKVO}, s{sKVO}, s{sT1}")
            e(f"s_lshl_b32 s{sT2}, s{sHP}, 11"); e(f"s_add_u32 s{sKVO}, s{sKVO}, s{sT2}")
            e(f"s_add_u32 s{sKVO}, s{sKVO}, {WS_KV}")
            e(f"v_and_b32 v{vX1}, 31, v0"); e(f"v_lshlrev_b32 v{vX1}, 6, v{vX1}")
            e(f"v_lshrrev_b32 v{vX0}, 5, v0"); e(f"v_lshl_add_u32 v{vX1}, v{vX0}, 12, v{vX1}")
        if n == 29 and FILL:
            e(f"buffer_load_dword v{vX0}, v{vX1}, {sr(SWS,4)}, s{sKVO} offen{FILLP}")
        if n == 27 and LOCAL:
            lcg(40, sEN1); lcg(42, sEN2)
            e(f"s_add_u32 s40, s40, s{sXCC}"); e(f"s_add_u32 s42, s42, s{sXCC}")
            e(f"v_readlane_b32 s{sT0}, v{vT3}, 0"); e(f"v_readlane_b32 s{sT1}, v{vT4}, 0")
            e(f"v_readlane_b32 s{sT2}, v{vT3}, 1"); e(f"v_readlane_b32 s{sT3}, v{vT4}, 1")
            e(f"s_cmp_eq_u64 {sr(sT0,2)}, s[40:41]"); e(f"s_cselect_b32 s40, 1, 0")
            e(f"s_cmp_eq_u64 {sr(sT2,2)}, s[42:43]"); e(f"s_cselect_b32 s41, 1, 0")
            e(f"s_cmp_ge_u32 s{sI}, 15"); e(f"s_cselect_b32 s40, 1, s40")
            e(f"s_cmp_ge_u32 s{sI}, 14"); e(f"s_cselect_b32 s41, 1, s41")
            e(f"s_and_b32 s{sLOC}, s40, s41")
            if not LOCAL: e(f"s_mov_b32 s{sLOC}, 0")
    e(f"s_waitcnt vmcnt({4 + FILL})")
    e("s_barrier")
    ts()
    if not LOCAL: tokens(False)
    e(f"v_add_u32 v{vWA}, {SLOT[3]-SLOT[2]}, v{vWA}")
    LB = 4
    def rq(n):
        wb = WB + 4 * (n % 6)
        e(f"ds_read_b64_tr_b16 {vr(wb,2)}, v{vWA} offset:{n*2048}")
        e(f"ds_read_b64_tr_b16 {vr(wb+2,2)}, v{vWA} offset:{n*2048+512}")
    for n in range(LB): rq(n)
    cm("---- K/V epilogue: pack, publish, stage own block ----")
    e(f"s_lshl_b32 s{sT1}, s{sTB}, 13"); e(f"s_lshl_b32 s{sT2}, s{sHP}, 11")
    e(f"v_and_b32 v{vT0}, 15, v0"); e(f"v_lshlrev_b32 v{vT0}, 4, v{vT0}")
    e(f"v_bfe_u32 v{vT1}, v0, 4, 1"); e(f"v_lshl_add_u32 v{vT0}, v{vT1}, 10, v{vT0}")
    e(f"v_lshrrev_b32 v{vT1}, 5, v0"); e(f"v_lshl_add_u32 v{vT0}, v{vT1}, 8, v{vT0}")
    e(f"v_add_u32 v{vT0}, 4096, v{vT0}")
    e(f"s_sub_u32 s{sT3}, 90112, s{sT1}"); e(f"s_add_u32 s{sT3}, s{sT3}, s{sT2}")
    e(f"v_add_u32 v{vT1}, s{sT3}, v{vL16}")
    e(f"v_add_u32 v{vT2}, s{sT3}, v{vT0}")
    for j in range(8): e(f"v_cvt_pk_bf16_f32 v{KD+j}, v{ACCK+2*j}, v{ACCK+2*j+1}")
    for j in range(8): e(f"v_cvt_pk_bf16_f32 v{ACCK+j}, v{ACCV+2*j}, v{ACCV+2*j+1}")
    def kvst(pol):
        e(f"buffer_store_dwordx4 {vr(KD,4)}, v{vL16}, {sr(SWS,4)}, s{sKVO} offen{pol}")
        e(f"buffer_store_dwordx4 {vr(KD+4,4)}, v{vL16}, {sr(SWS,4)}, s{sKVO} offen offset:1024{pol}")
        e(f"buffer_store_dwordx4 {vr(ACCK,4)}, v{vT0}, {sr(SWS,4)}, s{sKVO} offen{pol}")
        e(f"buffer_store_dwordx4 {vr(ACCK+4,4)}, v{vT0}, {sr(SWS,4)}, s{sKVO} offen offset:512{pol}")
    if LOCAL:
        e(f"s_cmp_eq_u32 s{sLOC}, 1")
        e("s_cbranch_scc1 L_kvl")
        kvst(" sc1")
        e("s_branch L_kvd")
        lab("L_kvl")
        kvst(KVST)
        lab("L_kvd")
    else: kvst(" sc1")
    cm("---- pass B: Q^T tile ----")
    for n in range(32):
        m = n + LB
        if m == 16:
            e(f"s_waitcnt vmcnt({4 + FILL})")
            e("s_barrier")
        if m < 32: rq(m)
        left = min(LB, 31 - n)
        extra = 4 if (n >= 1 and n <= LB) else 0
        cnt = 2 * left + (4 if n == 0 else 0) * 0
        if n >= 1 and n <= LB: cnt = 2 * left + 4 if n + LB > LB else cnt
        e(f"s_waitcnt lgkmcnt({min(cnt,15)})")
        wb = WB + 4 * (n % 6)
        e(f"{MF} {vr(ACCQ,16)}, {vr(wb,4)}, {vr(XF+4*n,4)}, {'0' if n == 0 else vr(ACCQ,16)}")
        if n == 0:
            e(f"ds_write_b128 v{vT1}, {vr(KD,4)}")
            e(f"ds_write_b128 v{vT1}, {vr(KD+4,4)} offset:1024")
            e(f"ds_write_b128 v{vT2}, {vr(ACCK,4)}")
            e(f"ds_write_b128 v{vT2}, {vr(ACCK+4,4)} offset:512")
    ts()
    e("s_waitcnt vmcnt(0)")
    if LOCAL:
        e(f"s_cmp_eq_u32 s{sLOC}, 1")
        e("s_cbranch_scc1 L_kvf")
        flag_store(sFO, sTOK)
        e("s_branch L_kvg")
        lab("L_kvf")
        flag_store(sFO, sTOK, "")
        lab("L_kvg")
    else: flag_store(sFO, sTOK)
    ts()

def handoff_kv():
    if PFO:
        e(f"s_lshl_b32 s{sT0}, s{sC}, 3"); e(f"s_add_u32 s{sT0}, s{sT0}, s{sWv}")
        e(f"s_lshl_b32 s{sT0}, s{sT0}, 13"); e(f"s_add_u32 s{sT0}, s{sT0}, s{sWOO}")
        e(f"s_add_u32 s40, s{SWO}, s{sT0}"); e(f"s_addc_u32 s41, s{SWO+1}, 0")
        for j in range(8):
            for h in range(PFO): e(f"s_load_dword s54, s[40:41], {j*1024 + h*64}")
    cm("---- fetch the K/V blocks of the two previous row blocks ----")
    e(f"s_add_u32 s{sT0}, s{sI}, s{sHP}")
    e(f"s_cmp_lt_u32 s{sT0}, 2")
    e("s_cselect_b32 s%d, 1, 0" % sDONE)
    e("s_cbranch_scc1 L_nokv")
    e(f"s_sub_u32 s{sT0}, s{sT0}, 2")
    e(f"s_lshl_b32 s{sT1}, s{sB}, 3"); e(f"s_add_u32 s{sT1}, s{sT1}, s{sG}")
    e(f"s_lshl_b32 s{sT1}, s{sT1}, 4"); e(f"s_add_u32 s{sT0}, s{sT0}, s{sT1}")
    e(f"s_and_b32 s{sT1}, s{sWv}, 3")
    e(f"s_lshl_b32 s{sFO}, s{sT0}, 10"); e(f"s_lshl_b32 s{sT2}, s{sT1}, 8")
    e(f"s_add_u32 s{sFO}, s{sFO}, s{sT2}"); e(f"s_add_u32 s{sFO}, s{sFO}, {WS_KVFLAG}")
    e(f"s_lshl_b32 s{sKVO}, s{sT0}, 15"); e(f"s_lshl_b32 s{sT2}, s{sT1}, 13")
    e(f"s_add_u32 s{sKVO}, s{sKVO}, s{sT2}"); e(f"s_add_u32 s{sKVO}, s{sKVO}, {WS_KV}")
    e(f"v_and_b32 v{vT0}, 1, v0"); e(f"v_lshlrev_b32 v{vT0}, 7, v{vT0}")
    poll("L_pkv", vT0, sFO, sTOKP, 2)
    if DIAG: e(f"s_add_u32 s{sTS+2}, s{sTS}, s{sCNT}")
    e(f"s_add_u32 s{sT0}, s{sKVO}, 4096")
    for j in range(8):
        e(f"buffer_load_dwordx4 {vr(STG+4*j,4)}, v{vL16}, {sr(SWS,4)}, s{sKVO if j < 4 else sT0} offen offset:{(j%4)*1024}{KVLD}")
    lab("L_nokv")
    if WOAT == 0: dma_wo_rot(1)
    ts()
    cm("Q: scale by log2(e)/4, pack")
    e(f"s_mov_b32 s{sT0}, 0x3eb8aa3b")
    for j in range(16): e(f"v_mul_f32 v{ACCQ+j}, s{sT0}, v{ACCQ+j}")
    for j in range(8): e(f"v_cvt_pk_bf16_f32 v{QF+j}, v{ACCQ+2*j}, v{ACCQ+2*j+1}")
    for j in range(16): e(f"v_mov_b32 v{CP+j}, 0")
    for j in range(16): e(f"v_mov_b32 v{VF[0]+j}, 0x3f803f80")
    e(f"s_lshl_b32 s{sT0}, s{sTB}, 13"); e(f"s_sub_u32 s{sT0}, {90112+8192}, s{sT0}")
    e(f"s_lshl_b32 s{sT1}, s{sHP}, 11"); e(f"s_add_u32 s{sT0}, s{sT0}, s{sT1}")
    e(f"v_add_u32 v{vKA}, s{sT0}, v{vL16}")
    e(f"v_and_b32 v{vT0}, 15, v0"); e(f"v_lshlrev_b32 v{vT0}, 4, v{vT0}")
    e(f"v_lshrrev_b32 v{vT1}, 5, v0"); e(f"v_lshl_add_u32 v{vT0}, v{vT1}, 8, v{vT0}")
    e(f"s_sub_u32 s{sT0}, s{sT0}, 4096")
    e(f"v_add_u32 v{vVA}, s{sT0}, v{vT0}")
    e(f"v_add_u32 v{vVA2}, 0x10000, v{vVA}")
    e(f"s_lshl_b32 s{sT0}, s{sI}, 2"); e(f"s_add_u32 s{sT0}, s{sT0}, s{sTB}")
    e(f"s_min_u32 s{sLAST}, s{sT0}, 8")
    e(f"s_lshl_b32 s{sT1}, s{sB}, 6"); e(f"s_add_u32 s{sT0}, s{sT0}, s{sT1}")
    e(f"s_lshl_b32 s{sOLD}, s{sT0}, 15"); e(f"s_lshl_b32 s{sT1}, s{sHP}, 11")
    e(f"s_add_u32 s{sOLD}, s{sOLD}, s{sT1}"); e(f"s_add_u32 s{sOLD}, s{sOLD}, {WS_O}")
    e(f"s_lshl_b32 s{sT1}, s{sG}, 12"); e(f"s_add_u32 s{sOST}, s{sOLD}, s{sT1}")
    e(f"s_lshl_b32 s{sFO}, s{sT0}, 9"); e(f"s_lshl_b32 s{sT1}, s{sHP}, 8")
    e(f"s_add_u32 s{sFO}, s{sFO}, s{sT1}"); e(f"s_add_u32 s{sFO}, s{sFO}, {WS_OFLAG}")
    e(f"v_and_b32 v{vFLG}, 7, v0"); e(f"v_lshlrev_b32 v{vFLG}, 3, v{vFLG}")
    e("s_barrier")
    if WOAT == 1: dma_wo_rot(1)
    e(f"s_cmp_eq_u32 s{sDONE}, 1")
    e("s_cbranch_scc1 L_nokv2")
    e(f"s_lshl_b32 s{sT0}, s{sWv}, 13"); e(f"s_sub_u32 s{sT0}, 155648, s{sT0}")
    e(f"v_add_u32 v{vT0}, s{sT0}, v{vL16}")
    for j in range(8):
        e(f"s_waitcnt vmcnt({8-j})")
        e(f"ds_write_b128 v{vT0}, {vr(STG+4*j,4)} offset:{j*1024}")
    lab("L_nokv2")
    if WOLATE == 1: dma_wo_rot()
    e("s_waitcnt lgkmcnt(0)")
    e("s_barrier")
    ts()
    e(f"s_mov_b32 s{sWOC}, 1")
    if PRIO: e("s_setprio 3")

def rdK(d):
    e(f"ds_read_b128 {vr(KF[d%2],4)}, v{vKA} offset:{(d-1)*8192}")
def rdV(d):
    a, off = (vVA, d*8192) if d < 8 else (vVA2, 0)
    e(f"s_mov_b64 exec, {sr(sVMASK,2)}")
    e(f"ds_read_b128 {vr(VF[d%2],4)}, v{a} offset:{off}")
    e(f"ds_read_b128 {vr(VF[d%2]+4,4)}, v{a} offset:{off+512}")
    e("s_mov_b64 exec, -1")
def ctup(d): return CD if d == 0 else (CF if d == 8 else CP)

def oloads(st):
    e(f"s_add_u32 s{sT0}, s{sOLD}, {st*1024}")
    for gq in range(8):
        e(f"buffer_load_dwordx4 {vr(OIN[gq],4)}, v{vL16}, {sr(SWS,4)}, s{sT0} offen sc1")
        if gq < 7: e(f"s_add_u32 s{sT0}, s{sT0}, 4096")

def attention(hh):
    q = QF + 4*hh; kd = KD + 4*hh
    cm(f"---- attention, head {hh} of the wave's pair ----")
    e(f"s_mov_b32 s{sFB}, 0")
    lab(f"L_att{hh}")
    rdK(1); rdV(0)
    e(f"{MF} {vr(S[0],16)}, {vr(kd,4)}, {vr(q,4)}, {vr(CD,16)}")
    for k in range(9):
        s = S[k%2]; p = P[k%2]; pp = P[(k-1)%2]; vp = VF[(k-1)%2]
        if PRIO:
            t = 9*hh + k
            for cls, th in ((0, PTH[0]), (1, PTH[1])):
                if t in th:
                    e(f"s_cmp_eq_u32 s{sHP}, {cls}")
                    e(f"s_cbranch_scc0 L_pr{t}_{cls}")
                    e(f"s_setprio {2 - th.index(t)}")
                    lab(f"L_pr{t}_{cls}")
        e("s_waitcnt lgkmcnt(2)")
        if k < 8:
            e(f"{MF} {vr(S[(k+1)%2],16)}, {vr(KF[(k+1)%2],4)}, {vr(q,4)}, {vr(ctup(k+1),16)}")
        if k == 0: e("s_nop 9")
        for r in range(6): e(f"v_exp_f32 v{s+r}, v{s+r}")
        if k >= 1: e(f"{MF} {vr(OA,16)}, {vr(vp,4)}, {vr(pp,4)}, {'0' if k == 1 else vr(OA,16)}")
        for r in range(6, 12): e(f"v_exp_f32 v{s+r}, v{s+r}")
        if k >= 1: e(f"{MF} {vr(OA,16)}, {vr(vp+4,4)}, {vr(pp+4,4)}, {vr(OA,16)}")
        if k < 7: rdK(k+2)
        if k < 8:
            rdV(k+1)
        for r in range(12, 16): e(f"v_exp_f32 v{s+r}, v{s+r}")
        for j in range(8): e(f"v_cvt_pk_bf16_f32 v{p+j}, v{s+2*j}, v{s+2*j+1}")
        if hh == 0 and 1 <= k < 8:
            e(f"s_cmp_ge_u32 s{sWOC}, 8")
            e(f"s_cbranch_scc1 L_wo{k}")
            dma_wo_rot(1)
            e(f"s_add_u32 s{sWOC}, s{sWOC}, 1")
            lab(f"L_wo{k}")
        if hh == 1 and k == FK:
            e("s_waitcnt vmcnt(0)")
            flag_store(sOWNF, sTOK)
            e(f"s_mov_b32 s{sDONE}, 1")
        if hh == 1 and k in [x + 2 for x in PKS]:
            e(f"s_cmp_lg_u32 s{sEOK}, 1")
            e(f"s_cbranch_scc1 L_tc{k}")
            e("s_waitcnt vmcnt(0)")
            e(f"v_xor_b32 v{vT3}, s{sTOK}, v{vT3}")
            e(f"v_xor_b32 v{vT4}, s{sTOK+1}, v{vT4}")
            e(f"v_or_b32 v{vT3}, v{vT3}, v{vT4}")
            e(f"v_cmp_ne_u32 vcc, 0, v{vT3}")
            e(f"s_cbranch_vccnz L_tc{k}")
            oloads(0)
            e(f"s_mov_b32 s{sEOK}, 2")
            lab(f"L_tc{k}")
        if hh == 1 and k in PKS:
            e(f"s_cmp_eq_u32 s{sEOK}, 2")
            e(f"s_cbranch_scc1 L_tl{k}")
            e(f"buffer_load_dwordx2 {vr(vT3,2)}, v{vFLG}, {sr(SWS,4)}, s{sFO} offen sc1")
            e(f"s_mov_b32 s{sEOK}, 1")
            lab(f"L_tl{k}")
        if k < 8:
            e(f"s_cmp_eq_u32 s{sLAST}, {k}")
            e(f"s_cbranch_scc1 L_x{hh}_{k}")
    def tail(k):
        e("s_waitcnt lgkmcnt(0)")
        e("s_nop 0")
        e(f"{MF} {vr(OA,16)}, {vr(VF[k%2],4)}, {vr(P[k%2],4)}, {'0' if k == 0 else vr(OA,16)}")
        e(f"{MF} {vr(OA,16)}, {vr(VF[k%2]+4,4)}, {vr(P[k%2]+4,4)}, {vr(OA,16)}")
    tail(8)
    lab(f"L_fin{hh}")
    e("s_nop 11")
    e(f"v_mov_b32 v{vT0}, v{OA+8}")
    e(f"v_rcp_f32 v{vT1}, v{OA+8}")
    for r in range(8): e(f"v_fma_f32 v{vT0}, v{OA+r}, 0, v{vT0}")
    e(f"s_mov_b32 s{sT0}, 0x71800000")
    e(f"s_mov_b32 s{sT1}, 0x0d800000")
    e(f"v_cmp_nlt_f32 vcc, v{vT0}, s{sT0}" if False else f"v_cmp_ngt_f32 vcc, s{sT0}, v{vT0}")
    e(f"v_cmp_nlt_f32 {sr(sT2,2)}, s{sT1}, v{vT0}")
    for r in range(8): e(f"v_mul_f32 v{OA+r}, v{OA+r}, v{vT1}")
    e(f"s_or_b64 vcc, vcc, {sr(sT2,2)}")
    e(f"s_cbranch_scc1 L_fb{hh}")
    lab(f"L_ok{hh}")
    for j in range(4): e(f"v_cvt_pk_bf16_f32 v{OA+j}, v{OA+2*j}, v{OA+2*j+1}")
    e(f"buffer_store_dwordx4 {vr(OA,4)}, v{vL16}, {sr(SWS,4)}, s{sOST} offen offset:{hh*1024} sc1")
    def stubs():
        for k in range(8):
            lab(f"L_x{hh}_{k}")
            tail(k)
            e(f"s_branch L_fin{hh}")
        lab(f"L_fb{hh}")
        e(f"s_cmp_eq_u32 s{sFB}, 1")
        e(f"s_cbranch_scc1 L_fbdone{hh}")
        e(f"s_mov_b32 s{sFB}, 1")
        e(f"{MF} {vr(S[0],16)}, {vr(kd,4)}, {vr(q,4)}, {vr(CD,16)}")
        e(f"v_mov_b32 v{vT0}, 0xff7fffff")
        e(f"v_mov_b32 v{vT2}, v{vKA}")
        e(f"s_mov_b32 s{sCNT}, 0")
        lab(f"L_fbl{hh}")
        e("s_nop 15")
        for j in range(8): e(f"v_max3_f32 v{vT0}, v{S[0]+2*j}, v{S[0]+2*j+1}, v{vT0}")
        e(f"s_cmp_eq_u32 s{sCNT}, s{sLAST}")
        e(f"s_cbranch_scc1 L_fbm{hh}")
        e(f"s_add_u32 s{sCNT}, s{sCNT}, 1")
        e(f"ds_read_b128 {vr(KF[0],4)}, v{vT2}")
        e(f"v_add_u32 v{vT2}, 8192, v{vT2}")
        e("s_waitcnt lgkmcnt(0)")
        e(f"s_cmp_eq_u32 s{sCNT}, 8")
        e(f"s_cbranch_scc1 L_fbf{hh}")
        e(f"{MF} {vr(S[0],16)}, {vr(KF[0],4)}, {vr(q,4)}, 0")
        e(f"s_branch L_fbl{hh}")
        lab(f"L_fbf{hh}")
        e(f"{MF} {vr(S[0],16)}, {vr(KF[0],4)}, {vr(q,4)}, {vr(CF,16)}")
        e(f"s_branch L_fbl{hh}")
        lab(f"L_fbm{hh}")
        e(f"v_mov_b32 v{vT1}, v{vT0}")
        e("s_nop 1")
        e(f"v_permlane32_swap_b32 v{vT0}, v{vT1}")
        e("s_nop 1")
        e(f"v_max_f32 v{vT0}, v{vT0}, v{vT1}")
        for j in range(16):
            e(f"v_sub_f32 v{CD+j}, v{CD+j}, v{vT0}")
            e(f"v_sub_f32 v{CF+j}, v{CF+j}, v{vT0}")
            e(f"v_sub_f32 v{CP+j}, 0, v{vT0}")
        e("s_nop 1")
        e(f"s_branch L_att{hh}")
        lab(f"L_fbdone{hh}")
        e(f"s_branch L_ok{hh}")
    return stubs

def restore_c(tag):
    e(f"s_cmp_eq_u32 s{sFB}, 0")
    e(f"s_cbranch_scc1 {tag}")
    build_masks()
    for j in range(16): e(f"v_mov_b32 v{CP+j}, 0")
    lab(tag)

def outproj(st):
    cm(f"---- out-projection stage {st} ----")
    if st == 1: oloads(1)
    def rw(gq):
        f = WOF[gq % 2]
        for ct, a in enumerate((vWOA0, vWOA1)):
            e(f"ds_read_b64_tr_b16 {vr(f+4*ct,2)}, v{a} offset:{gq*8192+st*2048}")
            e(f"ds_read_b64_tr_b16 {vr(f+4*ct+2,2)}, v{a} offset:{gq*8192+st*2048+1024}")
    if st == 0:
        e("s_waitcnt vmcnt(0)")
        e(f"s_cmp_lg_u32 s{sEOK}, 2")
        e("s_cbranch_scc1 L_e1")
        flag_store(sOWNF, sTOK)
        lab("L_e1")
        e("s_barrier")
        ts()
    rw(0)
    for gq in range(8):
        if gq < 7: rw(gq+1)
        if st == 0: e(f"s_waitcnt lgkmcnt({4 if gq < 7 else 0})")
        else: e(f"s_waitcnt vmcnt({7-gq}) lgkmcnt({4 if gq < 7 else 0})")
        f = WOF[gq % 2]
        for ct in range(2):
            c = "0" if (st == 0 and gq == 0) else vr(OUTA[ct],16)
            e(f"{MF} {vr(OUTA[ct],16)}, {vr(f+4*ct,4)}, {vr(OIN[gq],4)}, {c}")

def phase23():
    e(f"s_mov_b32 s{sDONE}, 0")
    e(f"s_lshl_b32 s{sOWNF}, s{sG}, 3"); e(f"s_add_u32 s{sOWNF}, s{sOWNF}, s{sFO}")
    st0 = attention(0)
    lab("L_wor")
    e(f"s_cmp_ge_u32 s{sWOC}, 8")
    e("s_cbranch_scc1 L_wod")
    dma_wo_rot(1)
    e(f"s_add_u32 s{sWOC}, s{sWOC}, 1")
    e("s_branch L_wor")
    lab("L_wod")
    e(f"s_mov_b32 s{sEOK}, 0")
    ts()
    restore_c("L_rc0")
    e(f"v_add_u32 v{vKA}, 1024, v{vKA}"); e(f"v_add_u32 v{vVA}, 1024, v{vVA}"); e(f"v_add_u32 v{vVA2}, 1024, v{vVA2}")
    st1 = attention(1)
    ts()
    e(f"v_bfe_u32 v{vT0}, v0, 2, 2")
    e(f"v_lshrrev_b32 v{vT1}, 5, v0")
    e(f"v_lshl_add_u32 v{vT0}, v{vT1}, 2, v{vT0}")
    e(f"v_lshlrev_b32 v{vT0}, 7, v{vT0}")
    e(f"s_lshl_b32 s{sT0}, s{sHP}, 12")
    e(f"v_add_u32 v{vT0}, s{sT0}, v{vT0}")
    e(f"v_bfe_u32 v{vT1}, v0, 1, 1"); e(f"v_lshl_add_u32 v{vT0}, v{vT1}, 3, v{vT0}")
    e(f"v_and_b32 v{vT1}, 1, v0"); e(f"v_lshlrev_b32 v{vT1}, 1, v{vT1}")
    e(f"v_bfe_u32 v{vT2}, v0, 4, 1"); e(f"v_add_u32 v{vT1}, v{vT1}, v{vT2}")
    e(f"v_bfe_u32 v{vT2}, v0, 3, 1"); e(f"v_lshlrev_b32 v{vT2}, 2, v{vT2}")
    e(f"v_xor_b32 v{vT1}, v{vT1}, v{vT2}")
    e(f"v_lshl_add_u32 v{vWOA0}, v{vT1}, 4, v{vT0}")
    e(f"v_xor_b32 v{vWOA1}, 64, v{vWOA0}")
    e(f"s_cmp_eq_u32 s{sDONE}, 1")
    e("s_cbranch_scc1 L_f0done")
    e("s_waitcnt vmcnt(1)")
    flag_store(sOWNF, sTOK)
    lab("L_f0done")
    e(f"s_add_u32 s{sOWNF}, s{sOWNF}, 128")
    e(f"s_cmp_eq_u32 s{sEOK}, 2")
    e("s_cbranch_scc1 L_e0")
    poll("L_po0", vFLG, sFO, sTOK, 2)
    flag_store(sOWNF, sTOK)
    oloads(0)
    lab("L_e0")
    ts()
    outproj(0)
    e(f"s_or_b32 s{sT0}, s{sG}, s{sWv}")
    e(f"s_cmp_lg_u32 s{sT0}, 0")
    e("s_cbranch_scc1 L_noep")
    e(f"s_lshl_b32 s{sT0}, s{sB}, 5"); e(f"s_add_u32 s{sT0}, s{sT0}, s{sI}"); e(f"s_lshl_b32 s{sT0}, s{sT0}, 2")
    e(f"s_cmp_eq_u32 s{sI}, 15")
    e(f"s_cselect_b32 s{sT1}, 7, 1")
    e(f"v_mov_b32 v{vT0}, s{sEP}")
    e(f"v_writelane_b32 v{vT0}, s{sEP+1}, 1")
    e(f"v_writelane_b32 v{vT0}, s{sEP+2}, 2")
    e(f"s_mov_b32 s{sT2}, 1664525")
    e(f"v_mul_lo_u32 v{vT0}, v{vT0}, s{sT2}")
    e(f"v_add_u32 v{vT0}, 1013904223, v{vT0}")
    e(f"v_lshlrev_b32 v{vT1}, 2, v0")
    e(f"s_mov_b32 exec_lo, s{sT1}"); e("s_mov_b32 exec_hi, 0")
    e(f"buffer_store_dword v{vT0}, v{vT1}, {sr(SWS,4)}, s{sT0} offen")
    e("s_mov_b64 exec, -1")
    lab("L_noep")
    e(f"s_add_u32 s{sFO}, s{sFO}, 128")
    poll("L_po1", vFLG, sFO, sTOK, 2)
    ts()
    outproj(1)
    cm("---- pairwise reduction over the two head-pair waves, pack, store ----")
    e(f"s_lshl_b32 s{sT0}, s{sWv}, 12"); e(f"s_add_u32 s{sT0}, s{sT0}, 65536")
    e(f"v_add_u32 v{vT0}, s{sT0}, v{vL16}")
    e(f"s_sub_u32 s{sT1}, 7, s{sWv}")
    e(f"s_lshl_b32 s{sT1}, s{sT1}, 12"); e(f"s_add_u32 s{sT1}, s{sT1}, 65536")
    e(f"v_add_u32 v{vT1}, s{sT1}, v{vL16}")
    e(f"s_lshl_b32 s{sT0}, s{sI}, 2"); e(f"s_add_u32 s{sT0}, s{sT0}, s{sTB}"); e(f"s_lshl_b32 s{sT0}, s{sT0}, 16")
    e(f"s_lshl_b32 s{sT1}, s{sB}, 10"); e(f"s_add_u32 s{sT0}, s{sT0}, s{sT1}")
    e(f"s_lshl_b32 s{sT1}, s{sG}, 7"); e(f"s_add_u32 s{sT0}, s{sT0}, s{sT1}")
    e(f"s_lshl_b32 s{sT1}, s{sHP}, 6"); e(f"s_add_u32 s{sT0}, s{sT0}, s{sT1}")
    e(f"v_and_b32 v{vT2}, 31, v0"); e(f"v_lshlrev_b32 v{vT2}, 11, v{vT2}")
    e(f"v_lshrrev_b32 v{vT3}, 5, v0"); e(f"v_lshl_add_u32 v{vT2}, v{vT3}, 5, v{vT2}")
    e(f"s_cmp_eq_u32 s{sHP}, 0")
    e("s_cbranch_scc1 L_red0")
    for keep in (1, 0):
        if keep == 0: lab("L_red0")
        give = OUTA[1-keep]; mine = OUTA[keep]
        e("s_nop 3")
        for j in range(4): e(f"ds_write_b128 v{vT0}, {vr(give+4*j,4)} offset:{j*1024}")
        e("s_waitcnt lgkmcnt(0)")
        e("s_barrier")
        for j in range(4): e(f"ds_read_b128 {vr(S[0]+4*j,4)}, v{vT1} offset:{j*1024}")
        for j in range(4):
            e(f"s_waitcnt lgkmcnt({3-j})")
            for r in range(4): e(f"v_add_f32 v{mine+4*j+r}, v{mine+4*j+r}, v{S[0]+4*j+r}")
        for j in range(8): e(f"v_cvt_pk_bf16_f32 v{mine+j}, v{mine+2*j}, v{mine+2*j+1}")
        e(f"buffer_store_dwordx4 {vr(mine,4)}, v{vT2}, {sr(SOUT,4)}, s{sT0} offen{OUTP}")
        e(f"buffer_store_dwordx4 {vr(mine+4,4)}, v{vT2}, {sr(SOUT,4)}, s{sT0} offen offset:16{OUTP}")
        if keep == 1: e("s_branch L_stored")
    lab("L_stored")
    if DIAG:
        e("s_waitcnt vmcnt(0)")
        ts()
        e(f"s_memrealtime {sr(sT2,2)}"); e("s_waitcnt lgkmcnt(0)"); e(f"s_mov_b32 s{sTS+21}, s{sT2}")
        for n in list(range(tsn[0])) + [20, 21]:
            e(f"v_writelane_b32 v{vT0}, s{sTS+n}, {n}")
        if "--dbg" in sys.argv:
            e("s_mov_b64 s[4:5], s[50:51]"); e("s_mov_b32 s6, 256"); e("s_mov_b32 s7, 0x20000")
            e(f"s_not_b32 s{sT1}, s{sTS+20}")
            e(f"v_mov_b32 v{vT2}, s{sTS+21}"); e(f"v_writelane_b32 v{vT2}, s{sT1}, 1")
            sel = [2, 3, 7, 8, 9, 10, 11, 12, 13, 14, 15, 16, 17]
            for j, n in enumerate(sel):
                e(f"s_sub_u32 s{sT1}, s{sTS+n}, s{sTS}")
                e(f"v_writelane_b32 v{vT2}, s{sT1}, {2+j}")
            e(f"s_lshl_b32 s{sT1}, s2, 3"); e(f"s_add_u32 s{sT1}, s{sT1}, s{sWv}")
            e(f"s_cmp_eq_u32 s{sT1}, {opt('dbgw', '805')}")
            e(f"s_cselect_b32 s{sT1}, 0x7fff, 3")
            e(f"v_lshlrev_b32 v{vT1}, 2, v0")
            e(f"s_mov_b32 exec_lo, s{sT1}"); e("s_mov_b32 exec_hi, 0")
            e(f"buffer_atomic_umax v{vT2}, v{vT1}, s[4:7], 0 offen")
            e("s_mov_b64 exec, -1")
        e(f"s_lshl_b32 s{sT0}, s2, 3"); e(f"s_add_u32 s{sT0}, s{sT0}, s{sWv}"); e(f"s_lshl_b32 s{sT0}, s{sT0}, 7")
        e(f"s_add_u32 s{sT0}, s{sT0}, {WS_DIAG}")
        e(f"v_lshlrev_b32 v{vT1}, 2, v0")
        e("s_mov_b32 exec_lo, -1"); e("s_mov_b32 exec_hi, 0")
        e(f"buffer_store_dword v{vT0}, v{vT1}, {sr(SWS,4)}, s{sT0} offen")
    lab("L_end")
    e("s_endpgm")
    st0(); st1()
    lab("L_last")
    e("s_endpgm")

hdr = open("cdna_kernels/%s.s.ref" % NAME).read().split("\n")
out = [l for l in hdr if l.startswith(";") and "@launch" not in l and "Override" not in l and "grid=ceil" not in l]
out.append("; @launch grid=(256,1,1) block=(512,1,1) lds=163840")
out += ['.amdgcn_target "amdgcn-amd-amdhsa--gfx950"', ".text", f".globl {NAME}_kernel", ".p2align 8",
        f".type {NAME}_kernel,@function", f"{NAME}_kernel:"]
prologue(); phase1(); handoff_kv(); phase23()
out += L
out += ['.section .rodata,"a"', ".p2align 6", f".amdhsa_kernel {NAME}_kernel",
        "  .amdhsa_next_free_vgpr 256", "  .amdhsa_next_free_sgpr 102", "  .amdhsa_accum_offset 256",
        "  .amdhsa_group_segment_fixed_size 0", "  .amdhsa_kernarg_size 72", "  .amdhsa_user_sgpr_count 2",
        "  .amdhsa_user_sgpr_kernarg_segment_ptr 1", "  .amdhsa_system_sgpr_workgroup_id_x 1", ".end_amdhsa_kernel"]
print("\n".join(out))
```

```python
import sys
DIAG = "--diag" in sys.argv
def opt(name, dflt):
    for a in sys.argv[1:]:
        if a.startswith("--" + name + "="): return a.split("=", 1)[1]
    return dflt
ROT = opt("rot", "i2g")
PRE = 2
NT = int(opt("nt", "0"))
NAME = "concat_heads__sliding_block__sliding_block__prompt"
L = []
def e(s=""): L.append("    " + s)
def lab(s): L.append(s + ":")
def cm(s): L.append("    ; " + s)
def vr(a, n=1): return f"v{a}" if n == 1 else f"v[{a}:{a+n-1}]"
def sr(a, n=1): return f"s{a}" if n == 1 else f"s[{a}:{a+n-1}]"

WS_EPOCH = 0x0
WS_ANN = 0x1000
WS_KVFLAG = 0x40000
WS_OFLAG = 0x10000
WS_KV = 0x200000
WS_O = 0x1000000
WS_DIAG = 0x1800000
WS_SIZE = 0x2000000
SX, SW, SWO, SOUT, SWS = 4, 8, 12, 16, 20
sB, sI, sG, sWv, sTB, sHP = 24, 25, 26, 27, 28, 29
sTOK, sTOKP = 30, 32
sXO, sWKO, sWVO, sWQO, sWOO = 34, 35, 54, 55, 56
sM2K, sM1K = 57, 58
sLAST, sFB, sCNT, sT0, sT1, sT2, sT3 = 59, 60, 61, 62, 63, 64, 65
sEP = 68
sVMASK = 72
sKVO, sOST, sOLD, sFO = 74, 75, 76, 77
sDONE = 78
sOWNF = 79
sTM = 66
sC = 3
sTS = 80
vX0, vX1, vW, vWO = 1, 2, 3, 4
vXA = 5
vWA = 9
vL16 = 10
vT0, vT1, vT2, vT3, vT4 = 11, 12, 13, 14, 15
ACCK, ACCV, ACCQ = 16, 32, 48
WB = 64
CD, CF = 88, 104
KD = 120
XF = 128
QF = 64
CP = 128; S = [144, 160]; P = [176, 184]; KF = [192, 196]; VF = [200, 208]; OA = 216
OUTA = [16, 32]
OIN = [48, 52, 56, 60, 72, 76, 80, 84]
WOF = [232, 240]
vKA, vVA, vVA2, vWOA0, vWOA1, vFLG = 248, 249, 250, 251, 252, 253
vVW = 254
STG = 16

SLOT = [0, 32768, 65536, 98304, 131072]
tsn = [0]
ndma = [0]
TSDMA = "--tsdma" in sys.argv
FLAGSTEP = int(opt("fs", "31"))
EARLY = int(opt("early", "1"))
TOUCH = int(opt("touch", "1"))
FK = int(opt("fk", "2"))
PKS = [int(x) for x in opt("pks", "4,6").split(",")]
LOCAL = int(opt("local", "0"))
PFQ = int(opt("pfq", "0"))
PFO = int(opt("pfo", "0"))
FSC1 = int(opt("fsc1", "0"))
KVLD = {"sc1": " sc1", "plain": "", "nt": " nt", "sc0": " sc0"}[opt("kvld", "sc1")]
KVST = {"plain": "", "nt": " nt", "sc0": " sc0"}[opt("kvst", "plain")]
FILL = int(opt("fill", "0"))
FILLP = {"nt": " nt", "plain": ""}[opt("fillp", "nt")]
WOAT = int(opt("woat", "1"))
PRIO = int(opt("prio", "1"))
PTH = [[int(x) for x in s_.split(",")] for s_ in opt("pth", "4,9,14/6,11,16").split("/")]
OUTP = {"plain": "", "nt": " nt", "sc1": " sc1", "sc01": " sc0 sc1"}[opt("outp", "plain")]
SENT = int(opt("sent", "1"))
LF = int(opt("lf", "1"))
CPF = int(opt("cpf", "0"))
WOLATE = int(opt("wolate", "2"))
def ts():
    if DIAG:
        n = tsn[0]; tsn[0] += 1
        e(f"s_memtime {sr(sTM,2)}"); e("s_waitcnt lgkmcnt(0)"); e(f"s_mov_b32 s{sTS+n}, s{sTM}")

def dma(srd, voff, soff, ldsbase_s, ldsimm, pol=""):
    e(f"s_add_u32 m0, s{ldsbase_s}, {ldsimm}")
    e("s_nop 0")
    e(f"buffer_load_dwordx4 v{voff}, {sr(srd,4)}, s{soff} offen {pol}lds")
    ndma[0] += 1
    if TSDMA and ndma[0] in (1, 2, 3, 4, 6, 8): ts()

def next_c():
    e(f"s_add_u32 s{sC}, s{sC}, 1")
    e(f"s_and_b32 s{sC}, s{sC}, 7")
sEN1, sEN2, sXCC, sLOC, sPID, sANN = 36, 37, 38, 44, 45, 46
sKF, sSYN = 47, 39
sWOC, sEOK = 98, 99
sCX, sCW = 98, 99
def dma_piece(slot, j, px="", pw=""):
    if j == 0:
        e(f"s_lshl_b32 s{sCX}, s{sC}, 7")
        e(f"s_mul_i32 s{sCW}, s{sC}, {64*3072}")
        e(f"s_add_u32 s{sCX}, s{sCX}, s{sXO}")
        e(f"s_add_u32 s{sCW}, s{sCW}, s{sWKO}")
        dma(SX, vX0, sCX, sM2K, slot, px)
    elif j == 1: dma(SX, vX1, sCX, sM2K, slot + 1024, px)
    elif j == 2: dma(SW, vW, sCW, sM1K, slot + 16384, pw)
    else:
        e(f"s_add_u32 s{sCW}, s{sCW}, 1024")
        dma(SW, vW, sCW, sM1K, slot + 24576, pw)
        next_c()
def dma_chunk(slot, px="", pw=""):
    for j in range(4): dma_piece(slot, j, px, pw)
def dma_wq_piece(q):
    e(f"s_mul_i32 s{sCW}, s{sC}, {64*3072}")
    e(f"s_add_u32 s{sCW}, s{sCW}, s{sWQO}")
    dma(SW, vW, sCW, sM1K, SLOT[3] + q*8192)
    next_c()
def dma_wo_rot(cnt=8):
    for q in range(cnt):
        e(f"s_lshl_b32 s{sT0}, s{sC}, 13")
        e(f"s_lshl_b32 s{sT1}, s{sC}, 16")
        e(f"s_add_u32 s{sT0}, s{sT0}, s{sM1K}")
        e(f"s_add_u32 s{sT1}, s{sT1}, s{sWOO}")
        dma(SWO, vWO, sT1, sT0, 0)
        next_c()
def dma_wo(half):
    if WOLATE: return
    for q in range(4):
        dma(SWO, vWO, sWOO, sM1K, (half*4+q)*8192)
        e(f"s_add_u32 s{sWOO}, s{sWOO}, {64*1024}")

def lcg(dst, src):
    e(f"s_mul_i32 s{dst}, s{src}, 1664525")
    e(f"s_add_u32 s{dst}, s{dst}, 1013904223")
    e(f"s_xor_b32 s{dst+1}, s{dst}, 0x9e3779b9")

def tokens(wait):
    if wait: e("s_waitcnt lgkmcnt(0)")
    lcg(sTOK, sEP + 2)
    e(f"s_cmp_lt_u32 s{sWv}, 4")
    e(f"s_cselect_b32 s{sT0}, s{sEP}, s{sEP+1}")
    lcg(sTOKP, sT0)

def build_masks():
    e(f"v_and_b32 v{vT0}, 31, v0")
    e(f"v_bfe_u32 v{vT1}, v0, 5, 1")
    e(f"v_lshlrev_b32 v{vT1}, 2, v{vT1}")
    e(f"v_sub_u32 v{vT0}, v{vT0}, v{vT1}")
    e(f"v_mov_b32 v{vT1}, 0xf149f2ca")
    e(f"v_mov_b32 v{vT2}, 0")
    for r in range(16):
        kk = 8*(r//4) + r % 4
        e(f"v_cmp_le_i32 vcc, {kk}, v{vT0}")
        e("s_nop 1")
        e(f"v_cndmask_b32 v{CD+r}, v{vT1}, v{vT2}, vcc")
        e(f"v_cndmask_b32 v{CF+r}, v{vT2}, v{vT1}, vcc")

def poll(name, voff, soff, tok, nwords):
    e(f"s_mov_b32 s{sCNT}, 0")
    lab(name)
    e(f"buffer_load_dwordx{nwords} {vr(vT0 + 1, nwords)}, v{voff}, {sr(SWS,4)}, s{soff} offen sc1")
    e(f"s_add_u32 s{sCNT}, s{sCNT}, 1")
    e("s_waitcnt vmcnt(0)")
    e(f"v_xor_b32 v{vT0+1}, s{tok}, v{vT0+1}")
    e(f"v_xor_b32 v{vT0+2}, s{tok+1}, v{vT0+2}")
    if nwords == 4:
        e(f"v_xor_b32 v{vT0+3}, s{tok}, v{vT0+3}")
        e(f"v_xor_b32 v{vT0+4}, s{tok+1}, v{vT0+4}")
        e(f"v_or3_b32 v{vT0+1}, v{vT0+1}, v{vT0+3}, v{vT0+4}")
    e(f"v_or_b32 v{vT0+1}, v{vT0+1}, v{vT0+2}")
    e(f"v_cmp_ne_u32 vcc, 0, v{vT0+1}")
    e(f"s_cbranch_vccz {name}_ok")
    e(f"s_cmp_lt_u32 s{sCNT}, 0x400000")
    e(f"s_cbranch_scc1 {name}")
    lab(name + "_ok")

def flag_store(soff, tok, pol=" sc1"):
    e(f"v_mov_b32 v{vT0+1}, s{tok}")
    e(f"v_mov_b32 v{vT0+2}, s{tok+1}")
    e(f"v_mov_b32 v{vT0}, 0")
    e("s_mov_b64 exec, 1")
    e(f"buffer_store_dwordx2 {vr(vT0+1,2)}, v{vT0}, {sr(SWS,4)}, s{soff} offen{pol}")
    e("s_mov_b64 exec, -1")

MF = "v_mfma_f32_32x32x16_bf16"

def prologue():
    e("s_cmp_ge_u32 s2, 256")
    e("s_cbranch_scc1 L_end")
    e("s_load_dwordx16 s[36:51], s[0:1], 0")
    e("s_load_dwordx2 s[52:53], s[0:1], 64")
    if DIAG:
        e(f"s_memrealtime {sr(sT2,2)}"); e("s_waitcnt lgkmcnt(0)"); e(f"s_mov_b32 s{sTS+20}, s{sT2}")
    ts()
    e(f"v_lshrrev_b32 v{vT0}, 6, v0")
    if CPF:
        e(f"s_getpc_b64 {sr(sT2,2)}")
        lab("L_pc")
        e(f"v_lshlrev_b32 v{vT1}, 6, v0")
        e(f"v_min_u32 v{vT1}, L_last-L_pc, v{vT1}")
        e(f"global_load_dword v255, v{vT1}, {sr(sT2,2)}")
    e(f"s_and_b32 s{sT0}, s2, 7")
    e(f"v_readfirstlane_b32 s{sWv}, v{vT0}")
    e(f"s_lshr_b32 s{sT1}, s2, 3")
    e(f"s_lshr_b32 s{sB}, s{sT0}, 2")
    e(f"s_bfe_u32 s{sI}, s{sT0}, 0x10001")
    e(f"s_lshl_b32 s{sI}, s{sI}, 3")
    e(f"s_lshr_b32 s{sT2}, s{sT1}, 2")
    e(f"s_add_u32 s{sI}, s{sI}, s{sT2}")
    e(f"s_and_b32 s{sG}, s{sT0}, 1")
    e(f"s_lshl_b32 s{sG}, s{sG}, 2")
    e(f"s_and_b32 s{sT2}, s{sT1}, 3")
    e(f"s_add_u32 s{sG}, s{sG}, s{sT2}")
    e("v_and_b32 v0, 63, v0")
    e(f"s_lshr_b32 s{sHP}, s{sWv}, 2")
    e(f"s_sub_u32 s{sT2}, 7, s{sWv}")
    e(f"s_cmp_lt_u32 s{sWv}, 4")
    e(f"s_cselect_b32 s{sTB}, s{sWv}, s{sT2}")
    e(f"s_lshl_b32 s{sM2K}, s{sWv}, 11")
    e(f"s_lshl_b32 s{sM1K}, s{sWv}, 10")
    e(f"v_lshrrev_b32 v{vT0}, 3, v0")
    e(f"v_and_b32 v{vT1}, 7, v0")
    e(f"v_lshrrev_b32 v{vT2}, 4, v0")
    e(f"v_xor_b32 v{vT3}, v{vT1}, v{vT2}")
    e(f"s_lshl_b32 s{sT2}, s{sWv}, 4")
    e(f"v_add_u32 v{vT4}, s{sT2}, v{vT0}")
    e(f"v_lshlrev_b32 v{vT4}, 10, v{vT4}")
    e(f"v_lshl_add_u32 v{vX0}, v{vT3}, 4, v{vT4}")
    e(f"v_xor_b32 v{vT3}, 4, v{vT3}")
    e(f"v_lshl_add_u32 v{vX1}, v{vT3}, 4, v{vT4}")
    e(f"v_add_u32 v{vX1}, 8192, v{vX1}")
    e(f"v_and_b32 v{vT2}, 1, v{vT2}")
    e(f"v_lshlrev_b32 v{vT2}, 2, v{vT2}")
    e(f"v_xor_b32 v{vT1}, v{vT1}, v{vT2}")
    e(f"s_lshl_b32 s{sT2}, s{sWv}, 3")
    e(f"v_add_u32 v{vT0}, s{sT2}, v{vT0}")
    e(f"v_mul_u32_u24 v{vT4}, 3072, v{vT0}")
    e(f"v_lshl_add_u32 v{vW}, v{vT1}, 4, v{vT4}")
    e(f"v_lshlrev_b32 v{vT4}, 10, v{vT0}")
    e(f"v_lshl_add_u32 v{vWO}, v{vT1}, 4, v{vT4}")
    e(f"s_lshl_b32 s{sXO}, s{sI}, 17")
    e(f"s_lshl_b32 s{sWQO}, s{sG}, 7")
    e(f"s_add_u32 s{sWKO}, s{sWQO}, 1024")
    e(f"s_mov_b32 s{sWOO}, s{sWQO}")
    if ROT == "ig": e(f"s_add_u32 s{sC}, s{sI}, s{sG}")
    elif ROT == "i2g":
        e(f"s_lshl_b32 s{sC}, s{sG}, 1"); e(f"s_add_u32 s{sC}, s{sC}, s{sI}")
    elif ROT == "i2gh":
        e(f"s_lshl_b32 s{sC}, s{sG}, 1"); e(f"s_add_u32 s{sC}, s{sC}, s{sI}")
        e(f"s_lshr_b32 s{sT2}, s{sG}, 2"); e(f"s_add_u32 s{sC}, s{sC}, s{sT2}")
    else: e(f"s_mov_b32 s{sC}, 0")
    e(f"s_and_b32 s{sC}, s{sC}, 7")
    e("s_waitcnt lgkmcnt(0)")
    ts()
    e(f"s_cmp_eq_u32 s{sB}, 0")
    e(f"s_cselect_b64 {sr(SX,2)}, s[36:37], s[42:43]")
    e(f"s_cselect_b64 {sr(SW,2)}, s[38:39], s[44:45]")
    e(f"s_cselect_b64 {sr(SWO,2)}, s[40:41], s[46:47]")
    e(f"s_mov_b32 s{SX+2}, {2048*512*2}"); e(f"s_mov_b32 s{SX+3}, 0x20000")
    e(f"s_mov_b32 s{SW+2}, {512*1536*2}"); e(f"s_mov_b32 s{SW+3}, 0x20000")
    def pre_chunk(c): dma_chunk(SLOT[c], "nt " if c < NT else "", "nt " if (c == 0 and NT) else "")
    for c in range(1 if EARLY else PRE): pre_chunk(c)
    ts()
    e(f"s_mov_b32 s{SWO+2}, {512*512*2}"); e(f"s_mov_b32 s{SWO+3}, 0x20000")
    e(f"s_mov_b64 {sr(SOUT,2)}, s[48:49]"); e(f"s_mov_b32 s{SOUT+2}, {2048*1024*2}"); e(f"s_mov_b32 s{SOUT+3}, 0x20000")
    e(f"s_mov_b64 {sr(SWS,2)}, s[52:53]"); e(f"s_mov_b32 s{SWS+2}, {WS_SIZE}"); e(f"s_mov_b32 s{SWS+3}, 0x20000")
    e(f"s_lshl_b32 s{sT0}, s{sB}, 5")
    e(f"s_add_u32 s{sT0}, s{sT0}, s{sI}")
    e(f"s_lshl_b32 s{sT0}, s{sT0}, 2")
    e(f"s_load_dword s{sEP}, s[52:53], s{sT0}")
    e(f"s_add_u32 s{sT1}, s{sT0}, 4")
    e(f"s_load_dword s{sEP+1}, s[52:53], s{sT1}")
    e(f"s_add_u32 s{sT1}, s{sT0}, 8")
    e(f"s_load_dword s{sEP+2}, s[52:53], s{sT1}")
    if LOCAL:
        e(f"s_add_u32 s{sT1}, s{sT0}, 12")
        e(f"s_load_dword s{sEN1}, s[52:53], s{sT1}")
        e(f"s_add_u32 s{sT1}, s{sT0}, 16")
        e(f"s_load_dword s{sEN2}, s[52:53], s{sT1}")
        e(f"s_getreg_b32 s{sXCC}, hwreg(HW_REG_XCC_ID, 0, 4)")
    e(f"v_and_b32 v{vT0}, 31, v0")
    e(f"v_lshrrev_b32 v{vT1}, 5, v0")
    e(f"v_bfe_u32 v{vT2}, v0, 1, 3")
    e(f"s_lshl_b32 s{sT2}, s{sTB}, 12")
    e(f"v_lshlrev_b32 v{vT3}, 7, v{vT0}")
    e(f"v_add_u32 v{vT3}, s{sT2}, v{vT3}")
    for s in range(4):
        e(f"v_add_u32 v{vT4}, {2*s}, v{vT1}")
        e(f"v_xor_b32 v{vT4}, v{vT4}, v{vT2}")
        e(f"v_lshl_add_u32 v{vXA+s}, v{vT4}, 4, v{vT3}")
    e(f"v_bfe_u32 v{vT0}, v0, 2, 2")
    e(f"v_lshl_add_u32 v{vT2}, v{vT1}, 3, v{vT0}")
    e(f"v_lshlrev_b32 v{vT2}, 7, v{vT2}")
    e(f"v_bfe_u32 v{vT3}, v0, 4, 1")
    e(f"v_lshlrev_b32 v{vT3}, 1, v{vT3}")
    e(f"v_bfe_u32 v{vT4}, v0, 1, 1")
    e(f"v_add_u32 v{vT3}, v{vT3}, v{vT4}")
    e(f"s_lshl_b32 s{sT2}, s{sHP}, 2")
    e(f"v_add_u32 v{vT3}, s{sT2}, v{vT3}")
    e(f"v_bfe_u32 v{vT4}, v0, 3, 1")
    e(f"v_lshlrev_b32 v{vT4}, 2, v{vT4}")
    e(f"v_xor_b32 v{vT3}, v{vT3}, v{vT4}")
    e(f"v_lshl_add_u32 v{vT2}, v{vT3}, 4, v{vT2}")
    e(f"v_and_b32 v{vT3}, 1, v0")
    e(f"v_lshl_add_u32 v{vWA}, v{vT3}, 3, v{vT2}")
    e(f"v_lshlrev_b32 v{vL16}, 4, v0")
    build_masks()
    e(f"s_mov_b32 s{sVMASK}, 0x0000ffff"); e(f"s_mov_b32 s{sVMASK+1}, 0x0000ffff")
    if LOCAL: tokens(True)
    e(f"s_lshl_b32 s{sT0}, s{sB}, 3"); e(f"s_add_u32 s{sT0}, s{sT0}, s{sG}")
    e(f"s_lshl_b32 s{sT0}, s{sT0}, 4"); e(f"s_add_u32 s{sPID}, s{sT0}, s{sI}")
    e(f"s_lshl_b32 s{sANN}, s{sPID}, 3"); e(f"s_add_u32 s{sANN}, s{sANN}, {WS_ANN}")
    if LOCAL:
        e(f"s_cmp_lg_u32 s{sWv}, 0")
        e("s_cbranch_scc1 L_noann")
        e(f"s_add_u32 s{sT2}, s{sTOK}, s{sXCC}"); e(f"s_mov_b32 s{sT3}, s{sTOK+1}")
        flag_store(sANN, sT2)
        lab("L_noann")
    if TOUCH:
        e(f"s_lshl_b32 s{sT0}, s{sPID}, 15"); e(f"s_add_u32 s{sT0}, s{sT0}, {WS_KV}")
        e(f"v_mov_b32 v{vT0}, s{sT0}")
        e(f"s_lshl_b32 s{sT0}, s{sB}, 4"); e(f"s_add_u32 s{sT0}, s{sT0}, s{sI}")
        e(f"s_lshl_b32 s{sT0}, s{sT0}, 2"); e(f"s_add_u32 s{sT0}, s{sT0}, s{sTB}")
        e(f"s_lshl_b32 s{sT1}, s{sT0}, 15"); e(f"s_add_u32 s{sT1}, s{sT1}, {WS_O}")
        e(f"v_writelane_b32 v{vT0}, s{sT1}, 1")
        e(f"s_and_b32 s{sT2}, s{sT0}, 63"); e(f"s_lshl_b32 s{sT2}, s{sT2}, 16")
        e(f"s_lshl_b32 s{sT0}, s{sT0}, 1"); e(f"s_add_u32 s{sT0}, s{sT0}, s{sHP}")
        e(f"s_lshl_b32 s{sT0}, s{sT0}, 8"); e(f"s_add_u32 s{sT0}, s{sT0}, {WS_OFLAG}")
        e(f"v_writelane_b32 v{vT0}, s{sT0}, 2")
        e(f"s_add_u32 s{sT0}, s{sT0}, 128")
        e(f"v_writelane_b32 v{vT0}, s{sT0}, 3")
        e(f"s_lshl_b32 s{sT0}, s{sPID}, 2"); e(f"s_add_u32 s{sT0}, s{sT0}, s{sWv}")
        e(f"s_lshl_b32 s{sT0}, s{sT0}, 8"); e(f"s_add_u32 s{sT0}, s{sT0}, {WS_KVFLAG - 2048}")
        e(f"v_writelane_b32 v{vT0}, s{sT0}, 4")
        e(f"s_add_u32 s{sT0}, s{sT0}, 128")
        e(f"v_writelane_b32 v{vT0}, s{sT0}, 5")
        e("s_mov_b64 exec, 0x3f")
        e(f"buffer_load_dword v254, v{vT0}, {sr(SWS,4)}, 0 offen sc1")
        e("s_mov_b64 exec, 1")
        e(f"buffer_load_dword v253, off, {sr(SOUT,4)}, s{sT2}")
        e(f"buffer_load_dword v252, off, {sr(SWO,4)}, s{sWOO}")
        e("s_mov_b64 exec, -1")
    if EARLY:
        for c in range(1, PRE): pre_chunk(c)
    if PFQ:
        e(f"s_add_u32 s{sT0}, s{sC}, 6"); e(f"s_and_b32 s{sT0}, s{sT0}, 7")
        e(f"s_lshl_b32 s{sT0}, s{sT0}, 3"); e(f"s_add_u32 s{sT0}, s{sT0}, s{sWv}")
        e(f"s_mul_i32 s{sT0}, s{sT0}, {8*3072}"); e(f"s_add_u32 s{sT0}, s{sT0}, s{sWQO}")
        e(f"s_add_u32 s40, s{SW}, s{sT0}"); e(f"s_addc_u32 s41, s{SW+1}, 0")
        for j in range(8):
            for h in range(PFQ): e(f"s_load_dword s54, s[40:41], {j*3072 + h*64}")

LA = 2
def p1_reads(n):
    s = n % 4
    wb = WB + 8 * (n % 3)
    e(f"ds_read_b128 {vr(XF+4*n,4)}, v{vXA+s}")
    for j, base in enumerate((16384, 24576)):
        e(f"ds_read_b64_tr_b16 {vr(wb+4*j,2)}, v{vWA} offset:{base+s*2048}")
        e(f"ds_read_b64_tr_b16 {vr(wb+4*j+2,2)}, v{vWA} offset:{base+s*2048+512}")
def p1_boundary(c):
    vm = 4
    e(f"s_waitcnt vmcnt({vm})")
    e("s_barrier")
    if c in ((0,) if TSDMA else (0, 2, 4, 6)): ts()
    if c >= 1:
        d = SLOT[c % 5] - SLOT[(c-1) % 5]
        for s in range(4): e(f"v_add_u32 v{vXA+s}, {d & 0xffffffff}, v{vXA+s}")
        e(f"v_add_u32 v{vWA}, {d & 0xffffffff}, v{vWA}")
def p1_refill(n):
    if n < 2:
        dma_piece(SLOT[2], 2*n); dma_piece(SLOT[2], 2*n+1)
    elif n < 22:
        c = (n + 2) // 4 + 2
        dma_piece(SLOT[c % 5], (n + 2) % 4)
    elif n < 30:
        dma_wq_piece(n - 22)

def phase1():
    cm("---- pass A: K^T and V tiles ----")
    p1_boundary(0)
    for n in range(LA): p1_reads(n)
    for n in range(32):
        m = n + LA
        if m < 32:
            if m % 4 == 0: p1_boundary(m // 4)
            p1_reads(m)
            out = 5 * LA
        else:
            out = 5 * (31 - n)
        e(f"s_waitcnt lgkmcnt({out})")
        wb = WB + 8 * (n % 3)
        c0 = "0" if n == 0 else None
        e(f"{MF} {vr(ACCK,16)}, {vr(wb,4)}, {vr(XF+4*n,4)}, {c0 or vr(ACCK,16)}")
        e(f"{MF} {vr(ACCV,16)}, {vr(XF+4*n,4)}, {vr(wb+4,4)}, {c0 or vr(ACCV,16)}")
        p1_refill(n)
        if n == 21 and LOCAL:
            e(f"v_lshlrev_b32 v{vT0}, 3, v0")
            e(f"s_mov_b64 exec, 3")
            e(f"buffer_load_dwordx2 {vr(vT3,2)}, v{vT0}, {sr(SWS,4)}, s{sANN} offen offset:8 sc1")
            e(f"s_mov_b64 exec, -1")
        if n == 28:
            e(f"s_lshl_b32 s{sFO}, s{sPID}, 10")
            e(f"s_lshl_b32 s{sT1}, s{sTB}, 8"); e(f"s_add_u32 s{sFO}, s{sFO}, s{sT1}")
            e(f"s_lshl_b32 s{sT1}, s{sHP}, 7"); e(f"s_add_u32 s{sFO}, s{sFO}, s{sT1}")
            e(f"s_add_u32 s{sFO}, s{sFO}, {WS_KVFLAG}")
            e(f"s_lshl_b32 s{sKVO}, s{sPID}, 15")
            e(f"s_lshl_b32 s{sT1}, s{sTB}, 13"); e(f"s_add_u32 s{sKVO}, s{sKVO}, s{sT1}")
            e(f"s_lshl_b32 s{sT2}, s{sHP}, 11"); e(f"s_add_u32 s{sKVO}, s{sKVO}, s{sT2}")
            e(f"s_add_u32 s{sKVO}, s{sKVO}, {WS_KV}")
            e(f"v_and_b32 v{vX1}, 31, v0"); e(f"v_lshlrev_b32 v{vX1}, 6, v{vX1}")
            e(f"v_lshrrev_b32 v{vX0}, 5, v0"); e(f"v_lshl_add_u32 v{vX1}, v{vX0}, 12, v{vX1}")
        if n == 29 and FILL:
            e(f"buffer_load_dword v{vX0}, v{vX1}, {sr(SWS,4)}, s{sKVO} offen{FILLP}")
        if n == 27 and LOCAL:
            lcg(40, sEN1); lcg(42, sEN2)
            e(f"s_add_u32 s40, s40, s{sXCC}"); e(f"s_add_u32 s42, s42, s{sXCC}")
            e(f"v_readlane_b32 s{sT0}, v{vT3}, 0"); e(f"v_readlane_b32 s{sT1}, v{vT4}, 0")
            e(f"v_readlane_b32 s{sT2}, v{vT3}, 1"); e(f"v_readlane_b32 s{sT3}, v{vT4}, 1")
            e(f"s_cmp_eq_u64 {sr(sT0,2)}, s[40:41]"); e(f"s_cselect_b32 s40, 1, 0")
            e(f"s_cmp_eq_u64 {sr(sT2,2)}, s[42:43]"); e(f"s_cselect_b32 s41, 1, 0")
            e(f"s_cmp_ge_u32 s{sI}, 15"); e(f"s_cselect_b32 s40, 1, s40")
            e(f"s_cmp_ge_u32 s{sI}, 14"); e(f"s_cselect_b32 s41, 1, s41")
            e(f"s_and_b32 s{sLOC}, s40, s41")
            if not LOCAL: e(f"s_mov_b32 s{sLOC}, 0")
    e(f"s_waitcnt vmcnt({4 + FILL})")
    e("s_barrier")
    ts()
    if not LOCAL: tokens(False)
    e(f"v_add_u32 v{vWA}, {SLOT[3]-SLOT[2]}, v{vWA}")
    LB = 4
    def rq(n):
        wb = WB + 4 * (n % 6)
        e(f"ds_read_b64_tr_b16 {vr(wb,2)}, v{vWA} offset:{n*2048}")
        e(f"ds_read_b64_tr_b16 {vr(wb+2,2)}, v{vWA} offset:{n*2048+512}")
    for n in range(LB): rq(n)
    cm("---- K/V epilogue: pack, publish, stage own block ----")
    e(f"s_lshl_b32 s{sT1}, s{sTB}, 13"); e(f"s_lshl_b32 s{sT2}, s{sHP}, 11")
    e(f"v_and_b32 v{vT0}, 15, v0"); e(f"v_lshlrev_b32 v{vT0}, 4, v{vT0}")
    e(f"v_bfe_u32 v{vT1}, v0, 4, 1"); e(f"v_lshl_add_u32 v{vT0}, v{vT1}, 10, v{vT0}")
    e(f"v_lshrrev_b32 v{vT1}, 5, v0"); e(f"v_lshl_add_u32 v{vT0}, v{vT1}, 8, v{vT0}")
    e(f"v_add_u32 v{vT0}, 4096, v{vT0}")
    e(f"s_sub_u32 s{sT3}, 90112, s{sT1}"); e(f"s_add_u32 s{sT3}, s{sT3}, s{sT2}")
    e(f"v_add_u32 v{vT1}, s{sT3}, v{vL16}")
    e(f"v_add_u32 v{vT2}, s{sT3}, v{vT0}")
    for j in range(8): e(f"v_cvt_pk_bf16_f32 v{KD+j}, v{ACCK+2*j}, v{ACCK+2*j+1}")
    for j in range(8): e(f"v_cvt_pk_bf16_f32 v{ACCK+j}, v{ACCV+2*j}, v{ACCV+2*j+1}")
    def kvst(pol):
        e(f"buffer_store_dwordx4 {vr(KD,4)}, v{vL16}, {sr(SWS,4)}, s{sKVO} offen{pol}")
        e(f"buffer_store_dwordx4 {vr(KD+4,4)}, v{vL16}, {sr(SWS,4)}, s{sKVO} offen offset:1024{pol}")
        e(f"buffer_store_dwordx4 {vr(ACCK,4)}, v{vT0}, {sr(SWS,4)}, s{sKVO} offen{pol}")
        e(f"buffer_store_dwordx4 {vr(ACCK+4,4)}, v{vT0}, {sr(SWS,4)}, s{sKVO} offen offset:512{pol}")
    if LOCAL:
        e(f"s_cmp_eq_u32 s{sLOC}, 1")
        e("s_cbranch_scc1 L_kvl")
        kvst(" sc1")
        e("s_branch L_kvd")
        lab("L_kvl")
        kvst(KVST)
        lab("L_kvd")
    else: kvst(" sc1")
    if SENT:
        e(f"s_lshl_b32 s{sCX}, s{sB}, 4"); e(f"s_add_u32 s{sCX}, s{sCX}, s{sI}")
        e(f"s_lshl_b32 s{sCX}, s{sCX}, 2"); e(f"s_add_u32 s{sCX}, s{sCX}, s{sTB}")
        e(f"s_lshl_b32 s{sCX}, s{sCX}, 3"); e(f"s_add_u32 s{sCX}, s{sCX}, s{sG}")
        e(f"s_lshl_b32 s{sCX}, s{sCX}, 1"); e(f"s_add_u32 s{sCX}, s{sCX}, s{sHP}")
        e(f"s_lshl_b32 s{sCX}, s{sCX}, 11"); e(f"s_add_u32 s{sCX}, s{sCX}, {WS_O + 1024}")
        for j in range(4): e(f"v_mov_b32 v{40+j}, -1")
        e(f"buffer_store_dwordx4 {vr(40,4)}, v{vL16}, {sr(SWS,4)}, s{sCX} offen sc1")
    cm("---- pass B: Q^T tile ----")
    for n in range(32):
        m = n + LB
        if m == 16:
            e(f"s_waitcnt vmcnt({4 + FILL + SENT})")
            e("s_barrier")
        if m < 32: rq(m)
        left = min(LB, 31 - n)
        extra = 4 if (n >= 1 and n <= LB) else 0
        cnt = 2 * left + (4 if n == 0 else 0) * 0
        if n >= 1 and n <= LB: cnt = 2 * left + 4 if n + LB > LB else cnt
        e(f"s_waitcnt lgkmcnt({min(cnt,15)})")
        wb = WB + 4 * (n % 6)
        e(f"{MF} {vr(ACCQ,16)}, {vr(wb,4)}, {vr(XF+4*n,4)}, {'0' if n == 0 else vr(ACCQ,16)}")
        if n == 0:
            e(f"ds_write_b128 v{vT1}, {vr(KD,4)}")
            e(f"ds_write_b128 v{vT1}, {vr(KD+4,4)} offset:1024")
            e(f"ds_write_b128 v{vT2}, {vr(ACCK,4)}")
            e(f"ds_write_b128 v{vT2}, {vr(ACCK+4,4)} offset:512")
    ts()
    e("s_waitcnt vmcnt(0)")
    if LOCAL:
        e(f"s_cmp_eq_u32 s{sLOC}, 1")
        e("s_cbranch_scc1 L_kvf")
        flag_store(sFO, sTOK)
        e("s_branch L_kvg")
        lab("L_kvf")
        flag_store(sFO, sTOK, "")
        lab("L_kvg")
    else: flag_store(sFO, sTOK)
    ts()

def handoff_kv():
    if PFO:
        e(f"s_lshl_b32 s{sT0}, s{sC}, 3"); e(f"s_add_u32 s{sT0}, s{sT0}, s{sWv}")
        e(f"s_lshl_b32 s{sT0}, s{sT0}, 13"); e(f"s_add_u32 s{sT0}, s{sT0}, s{sWOO}")
        e(f"s_add_u32 s40, s{SWO}, s{sT0}"); e(f"s_addc_u32 s41, s{SWO+1}, 0")
        for j in range(8):
            for h in range(PFO): e(f"s_load_dword s54, s[40:41], {j*1024 + h*64}")
    cm("---- fetch the K/V blocks of the two previous row blocks ----")
    e(f"s_add_u32 s{sT0}, s{sI}, s{sHP}")
    e(f"s_cmp_lt_u32 s{sT0}, 2")
    e("s_cselect_b32 s%d, 1, 0" % sDONE)
    e("s_cbranch_scc1 L_nokv")
    e(f"s_sub_u32 s{sT0}, s{sT0}, 2")
    e(f"s_lshl_b32 s{sT1}, s{sB}, 3"); e(f"s_add_u32 s{sT1}, s{sT1}, s{sG}")
    e(f"s_lshl_b32 s{sT1}, s{sT1}, 4"); e(f"s_add_u32 s{sT0}, s{sT0}, s{sT1}")
    e(f"s_and_b32 s{sT1}, s{sWv}, 3")
    e(f"s_lshl_b32 s{sFO}, s{sT0}, 10"); e(f"s_lshl_b32 s{sT2}, s{sT1}, 8")
    e(f"s_add_u32 s{sFO}, s{sFO}, s{sT2}"); e(f"s_add_u32 s{sFO}, s{sFO}, {WS_KVFLAG}")
    e(f"s_lshl_b32 s{sKVO}, s{sT0}, 15"); e(f"s_lshl_b32 s{sT2}, s{sT1}, 13")
    e(f"s_add_u32 s{sKVO}, s{sKVO}, s{sT2}"); e(f"s_add_u32 s{sKVO}, s{sKVO}, {WS_KV}")
    e(f"v_and_b32 v{vT0}, 1, v0"); e(f"v_lshlrev_b32 v{vT0}, 7, v{vT0}")
    poll("L_pkv", vT0, sFO, sTOKP, 2)
    if DIAG: e(f"s_add_u32 s{sTS+2}, s{sTS}, s{sCNT}")
    e(f"s_add_u32 s{sT0}, s{sKVO}, 4096")
    for j in range(8):
        e(f"buffer_load_dwordx4 {vr(STG+4*j,4)}, v{vL16}, {sr(SWS,4)}, s{sKVO if j < 4 else sT0} offen offset:{(j%4)*1024}{KVLD}")
    lab("L_nokv")
    if WOAT == 0: dma_wo_rot(1)
    ts()
    cm("Q: scale by log2(e)/4, pack")
    e(f"s_mov_b32 s{sT0}, 0x3eb8aa3b")
    for j in range(16): e(f"v_mul_f32 v{ACCQ+j}, s{sT0}, v{ACCQ+j}")
    for j in range(8): e(f"v_cvt_pk_bf16_f32 v{QF+j}, v{ACCQ+2*j}, v{ACCQ+2*j+1}")
    for j in range(16): e(f"v_mov_b32 v{CP+j}, 0")
    for j in range(16): e(f"v_mov_b32 v{VF[0]+j}, 0x3f803f80")
    e(f"s_lshl_b32 s{sT0}, s{sTB}, 13"); e(f"s_sub_u32 s{sT0}, {90112+8192}, s{sT0}")
    e(f"s_lshl_b32 s{sT1}, s{sHP}, 11"); e(f"s_add_u32 s{sT0}, s{sT0}, s{sT1}")
    e(f"v_add_u32 v{vKA}, s{sT0}, v{vL16}")
    e(f"v_and_b32 v{vT0}, 15, v0"); e(f"v_lshlrev_b32 v{vT0}, 4, v{vT0}")
    e(f"v_lshrrev_b32 v{vT1}, 5, v0"); e(f"v_lshl_add_u32 v{vT0}, v{vT1}, 8, v{vT0}")
    e(f"s_sub_u32 s{sT0}, s{sT0}, 4096")
    e(f"v_add_u32 v{vVA}, s{sT0}, v{vT0}")
    e(f"v_add_u32 v{vVA2}, 0x10000, v{vVA}")
    e(f"s_lshl_b32 s{sT0}, s{sI}, 2"); e(f"s_add_u32 s{sT0}, s{sT0}, s{sTB}")
    e(f"s_min_u32 s{sLAST}, s{sT0}, 8")
    e(f"s_lshl_b32 s{sT1}, s{sB}, 6"); e(f"s_add_u32 s{sT0}, s{sT0}, s{sT1}")
    e(f"s_lshl_b32 s{sOLD}, s{sT0}, 15"); e(f"s_lshl_b32 s{sT1}, s{sHP}, 11")
    e(f"s_add_u32 s{sOLD}, s{sOLD}, s{sT1}"); e(f"s_add_u32 s{sOLD}, s{sOLD}, {WS_O}")
    e(f"s_lshl_b32 s{sT1}, s{sG}, 12"); e(f"s_add_u32 s{sOST}, s{sOLD}, s{sT1}")
    e(f"s_lshl_b32 s{sFO}, s{sT0}, 9"); e(f"s_lshl_b32 s{sT1}, s{sHP}, 8")
    e(f"s_add_u32 s{sFO}, s{sFO}, s{sT1}"); e(f"s_add_u32 s{sFO}, s{sFO}, {WS_OFLAG}")
    e(f"v_and_b32 v{vFLG}, 7, v0"); e(f"v_lshlrev_b32 v{vFLG}, 3, v{vFLG}")
    e("s_barrier")
    if WOAT == 1: dma_wo_rot(1)
    e(f"s_cmp_eq_u32 s{sDONE}, 1")
    e("s_cbranch_scc1 L_nokv2")
    e(f"s_lshl_b32 s{sT0}, s{sWv}, 13"); e(f"s_sub_u32 s{sT0}, 155648, s{sT0}")
    e(f"v_add_u32 v{vT0}, s{sT0}, v{vL16}")
    for j in range(8):
        e(f"s_waitcnt vmcnt({8-j})")
        e(f"ds_write_b128 v{vT0}, {vr(STG+4*j,4)} offset:{j*1024}")
    lab("L_nokv2")
    if WOLATE == 1: dma_wo_rot()
    e("s_waitcnt lgkmcnt(0)")
    e("s_barrier")
    ts()
    e(f"s_mov_b32 s{sWOC}, 1")
    if PRIO: e("s_setprio 3")

def handoff_kv_lf():
    e("s_barrier")
    cm("Q: scale by log2(e)/4, pack")
    e(f"s_mov_b32 s{sT0}, 0x3eb8aa3b")
    for j in range(16): e(f"v_mul_f32 v{ACCQ+j}, s{sT0}, v{ACCQ+j}")
    for j in range(8): e(f"v_cvt_pk_bf16_f32 v{QF+j}, v{ACCQ+2*j}, v{ACCQ+2*j+1}")
    for j in range(16): e(f"v_mov_b32 v{CP+j}, 0")
    for j in range(16): e(f"v_mov_b32 v{VF[0]+j}, 0x3f803f80")
    e(f"s_lshl_b32 s{sT0}, s{sTB}, 13"); e(f"s_sub_u32 s{sT0}, {90112+8192}, s{sT0}")
    e(f"s_lshl_b32 s{sT1}, s{sHP}, 11"); e(f"s_add_u32 s{sT0}, s{sT0}, s{sT1}")
    e(f"v_add_u32 v{vKA}, s{sT0}, v{vL16}")
    e(f"v_and_b32 v{vT0}, 15, v0"); e(f"v_lshlrev_b32 v{vT0}, 4, v{vT0}")
    e(f"v_lshrrev_b32 v{vT1}, 5, v0"); e(f"v_lshl_add_u32 v{vT0}, v{vT1}, 8, v{vT0}")
    e(f"s_sub_u32 s{sT0}, s{sT0}, 4096")
    e(f"v_add_u32 v{vVA}, s{sT0}, v{vT0}")
    e(f"v_add_u32 v{vVA2}, 0x10000, v{vVA}")
    e(f"s_lshl_b32 s{sT0}, s{sI}, 2"); e(f"s_add_u32 s{sT0}, s{sT0}, s{sTB}")
    e(f"s_min_u32 s{sLAST}, s{sT0}, 8")
    e(f"s_lshl_b32 s{sT1}, s{sB}, 6"); e(f"s_add_u32 s{sT0}, s{sT0}, s{sT1}")
    e(f"s_lshl_b32 s{sOLD}, s{sT0}, 15"); e(f"s_lshl_b32 s{sT1}, s{sHP}, 11")
    e(f"s_add_u32 s{sOLD}, s{sOLD}, s{sT1}"); e(f"s_add_u32 s{sOLD}, s{sOLD}, {WS_O}")
    e(f"s_lshl_b32 s{sT1}, s{sG}, 12"); e(f"s_add_u32 s{sOST}, s{sOLD}, s{sT1}")
    e(f"s_lshl_b32 s{sFO}, s{sT0}, 9"); e(f"s_lshl_b32 s{sT1}, s{sHP}, 8")
    e(f"s_add_u32 s{sFO}, s{sFO}, s{sT1}"); e(f"s_add_u32 s{sFO}, s{sFO}, {WS_OFLAG}")
    e(f"v_and_b32 v{vFLG}, 7, v0"); e(f"v_lshlrev_b32 v{vFLG}, 3, v{vFLG}")
    cm("---- fetch the K/V blocks of the two previous row blocks ----")
    e(f"s_add_u32 s{sT0}, s{sI}, s{sHP}")
    e(f"s_cmp_lt_u32 s{sT0}, 2")
    e("s_cselect_b32 s%d, 1, 0" % sDONE)
    e("s_cbranch_scc1 L_nokv")
    e(f"s_sub_u32 s{sT0}, s{sT0}, 2")
    e(f"s_lshl_b32 s{sT1}, s{sB}, 3"); e(f"s_add_u32 s{sT1}, s{sT1}, s{sG}")
    e(f"s_lshl_b32 s{sT1}, s{sT1}, 4"); e(f"s_add_u32 s{sT0}, s{sT0}, s{sT1}")
    e(f"s_and_b32 s{sT1}, s{sWv}, 3")
    e(f"s_lshl_b32 s{sKF}, s{sT0}, 10"); e(f"s_lshl_b32 s{sT2}, s{sT1}, 8")
    e(f"s_add_u32 s{sKF}, s{sKF}, s{sT2}"); e(f"s_add_u32 s{sKF}, s{sKF}, {WS_KVFLAG}")
    e(f"s_lshl_b32 s{sKVO}, s{sT0}, 15"); e(f"s_lshl_b32 s{sT2}, s{sT1}, 13")
    e(f"s_add_u32 s{sKVO}, s{sKVO}, s{sT2}"); e(f"s_add_u32 s{sKVO}, s{sKVO}, {WS_KV}")
    e(f"v_and_b32 v{vT0}, 1, v0"); e(f"v_lshlrev_b32 v{vT0}, 7, v{vT0}")
    poll("L_pkv", vT0, sKF, sTOKP, 2)
    if DIAG: e(f"s_add_u32 s{sTS+2}, s{sTS}, s{sCNT}")
    e(f"s_lshl_b32 s{sT0}, s{sWv}, 13"); e(f"s_sub_u32 s{sT0}, 155648, s{sT0}")
    for j in range(8):
        e(f"s_add_u32 m0, s{sT0}, {j*1024}")
        e(f"s_add_u32 s{sT1}, s{sKVO}, {j*1024}")
        e(f"buffer_load_dwordx4 v{vL16}, {sr(SWS,4)}, s{sT1} offen sc1 lds")
    lab("L_nokv")
    dma_wo_rot(1)
    ts()
    e(f"s_mov_b32 s{sSYN}, s{sTB}")
    e(f"s_mov_b32 s{sWOC}, 1")
    if PRIO: e("s_setprio 3")
    ts()

def kv_sync(pos, vm):
    e(f"s_cmp_eq_u32 s{sSYN}, {pos}")
    e(f"s_cbranch_scc0 L_sy{pos}")
    e(f"s_waitcnt vmcnt({vm})")
    e("s_barrier")
    e(f"s_mov_b32 s{sSYN}, -1")
    lab(f"L_sy{pos}")

def rdK(d):
    e(f"ds_read_b128 {vr(KF[d%2],4)}, v{vKA} offset:{(d-1)*8192}")
def rdV(d):
    a, off = (vVA, d*8192) if d < 8 else (vVA2, 0)
    e(f"s_mov_b64 exec, {sr(sVMASK,2)}")
    e(f"ds_read_b128 {vr(VF[d%2],4)}, v{a} offset:{off}")
    e(f"ds_read_b128 {vr(VF[d%2]+4,4)}, v{a} offset:{off+512}")
    e("s_mov_b64 exec, -1")
def ctup(d): return CD if d == 0 else (CF if d == 8 else CP)

def oloads(st):
    e(f"s_add_u32 s{sT0}, s{sOLD}, {st*1024}")
    for gq in range(8):
        e(f"buffer_load_dwordx4 {vr(OIN[gq],4)}, v{vL16}, {sr(SWS,4)}, s{sT0} offen sc1")
        if gq < 7: e(f"s_add_u32 s{sT0}, s{sT0}, 4096")

def attention(hh):
    q = QF + 4*hh; kd = KD + 4*hh
    cm(f"---- attention, head {hh} of the wave's pair ----")
    e(f"s_mov_b32 s{sFB}, 0")
    lab(f"L_att{hh}")
    if LF and hh == 0:
        e(f"{MF} {vr(S[0],16)}, {vr(kd,4)}, {vr(q,4)}, {vr(CD,16)}")
        kv_sync(0, 1)
    rdK(1); rdV(0)
    if not (LF and hh == 0): e(f"{MF} {vr(S[0],16)}, {vr(kd,4)}, {vr(q,4)}, {vr(CD,16)}")
    for k in range(9):
        s = S[k%2]; p = P[k%2]; pp = P[(k-1)%2]; vp = VF[(k-1)%2]
        if PRIO:
            t = 9*hh + k
            for cls, th in ((0, PTH[0]), (1, PTH[1])):
                if t in th:
                    e(f"s_cmp_eq_u32 s{sHP}, {cls}")
                    e(f"s_cbranch_scc0 L_pr{t}_{cls}")
                    e(f"s_setprio {2 - th.index(t)}")
                    lab(f"L_pr{t}_{cls}")
        e("s_waitcnt lgkmcnt(2)")
        if k < 8:
            e(f"{MF} {vr(S[(k+1)%2],16)}, {vr(KF[(k+1)%2],4)}, {vr(q,4)}, {vr(ctup(k+1),16)}")
        if k == 0: e("s_nop 9")
        for r in range(6): e(f"v_exp_f32 v{s+r}, v{s+r}")
        if k >= 1: e(f"{MF} {vr(OA,16)}, {vr(vp,4)}, {vr(pp,4)}, {'0' if k == 1 else vr(OA,16)}")
        for r in range(6, 12): e(f"v_exp_f32 v{s+r}, v{s+r}")
        if k >= 1: e(f"{MF} {vr(OA,16)}, {vr(vp+4,4)}, {vr(pp+4,4)}, {vr(OA,16)}")
        if LF and hh == 0 and k < 3: kv_sync(k + 1, 2 if k == 2 else 1)
        if k < 7: rdK(k+2)
        if k < 8:
            rdV(k+1)
        for r in range(12, 16): e(f"v_exp_f32 v{s+r}, v{s+r}")
        for j in range(8): e(f"v_cvt_pk_bf16_f32 v{p+j}, v{s+2*j}, v{s+2*j+1}")
        if hh == 0 and 1 <= k < 8:
            e(f"s_cmp_ge_u32 s{sWOC}, 8")
            e(f"s_cbranch_scc1 L_wo{k}")
            dma_wo_rot(1)
            e(f"s_add_u32 s{sWOC}, s{sWOC}, 1")
            lab(f"L_wo{k}")
        if hh == 1 and k == FK:
            e("s_waitcnt vmcnt(0)")
            flag_store(sOWNF, sTOK)
            e(f"s_mov_b32 s{sDONE}, 1")
        if hh == 1 and k in [x + 2 for x in PKS]:
            e(f"s_cmp_lg_u32 s{sEOK}, 1")
            e(f"s_cbranch_scc1 L_tc{k}")
            e("s_waitcnt vmcnt(0)")
            e(f"v_xor_b32 v{vT3}, s{sTOK}, v{vT3}")
            e(f"v_xor_b32 v{vT4}, s{sTOK+1}, v{vT4}")
            e(f"v_or_b32 v{vT3}, v{vT3}, v{vT4}")
            e(f"v_cmp_ne_u32 vcc, 0, v{vT3}")
            e(f"s_cbranch_vccnz L_tc{k}")
            oloads(0)
            e(f"s_mov_b32 s{sEOK}, 2")
            lab(f"L_tc{k}")
        if hh == 1 and k in PKS:
            e(f"s_cmp_eq_u32 s{sEOK}, 2")
            e(f"s_cbranch_scc1 L_tl{k}")
            e(f"buffer_load_dwordx2 {vr(vT3,2)}, v{vFLG}, {sr(SWS,4)}, s{sFO} offen sc1")
            e(f"s_mov_b32 s{sEOK}, 1")
            lab(f"L_tl{k}")
        if k < 8:
            e(f"s_cmp_eq_u32 s{sLAST}, {k}")
            e(f"s_cbranch_scc1 L_x{hh}_{k}")
    def tail(k):
        e("s_waitcnt lgkmcnt(0)")
        e("s_nop 0")
        e(f"{MF} {vr(OA,16)}, {vr(VF[k%2],4)}, {vr(P[k%2],4)}, {'0' if k == 0 else vr(OA,16)}")
        e(f"{MF} {vr(OA,16)}, {vr(VF[k%2]+4,4)}, {vr(P[k%2]+4,4)}, {vr(OA,16)}")
    tail(8)
    lab(f"L_fin{hh}")
    e("s_nop 11")
    e(f"v_mov_b32 v{vT0}, v{OA+8}")
    e(f"v_rcp_f32 v{vT1}, v{OA+8}")
    for r in range(8): e(f"v_fma_f32 v{vT0}, v{OA+r}, 0, v{vT0}")
    e(f"s_mov_b32 s{sT0}, 0x71800000")
    e(f"s_mov_b32 s{sT1}, 0x0d800000")
    e(f"v_cmp_nlt_f32 vcc, v{vT0}, s{sT0}" if False else f"v_cmp_ngt_f32 vcc, s{sT0}, v{vT0}")
    e(f"v_cmp_nlt_f32 {sr(sT2,2)}, s{sT1}, v{vT0}")
    for r in range(8): e(f"v_mul_f32 v{OA+r}, v{OA+r}, v{vT1}")
    e(f"s_or_b64 vcc, vcc, {sr(sT2,2)}")
    e(f"s_cbranch_scc1 L_fb{hh}")
    lab(f"L_ok{hh}")
    for j in range(4): e(f"v_cvt_pk_bf16_f32 v{OA+j}, v{OA+2*j}, v{OA+2*j+1}")
    if hh == 1 and SENT:
        for j in range(4): e(f"v_min_u32 v{OA+j}, -2, v{OA+j}")
    e(f"buffer_store_dwordx4 {vr(OA,4)}, v{vL16}, {sr(SWS,4)}, s{sOST} offen offset:{hh*1024} sc1")
    def stubs():
        for k in range(8):
            lab(f"L_x{hh}_{k}")
            tail(k)
            e(f"s_branch L_fin{hh}")
        lab(f"L_fb{hh}")
        e(f"s_cmp_eq_u32 s{sFB}, 1")
        e(f"s_cbranch_scc1 L_fbdone{hh}")
        e(f"s_mov_b32 s{sFB}, 1")
        e(f"{MF} {vr(S[0],16)}, {vr(kd,4)}, {vr(q,4)}, {vr(CD,16)}")
        e(f"v_mov_b32 v{vT0}, 0xff7fffff")
        e(f"v_mov_b32 v{vT2}, v{vKA}")
        e(f"s_mov_b32 s{sCNT}, 0")
        lab(f"L_fbl{hh}")
        e("s_nop 15")
        for j in range(8): e(f"v_max3_f32 v{vT0}, v{S[0]+2*j}, v{S[0]+2*j+1}, v{vT0}")
        e(f"s_cmp_eq_u32 s{sCNT}, s{sLAST}")
        e(f"s_cbranch_scc1 L_fbm{hh}")
        e(f"s_add_u32 s{sCNT}, s{sCNT}, 1")
        e(f"ds_read_b128 {vr(KF[0],4)}, v{vT2}")
        e(f"v_add_u32 v{vT2}, 8192, v{vT2}")
        e("s_waitcnt lgkmcnt(0)")
        e(f"s_cmp_eq_u32 s{sCNT}, 8")
        e(f"s_cbranch_scc1 L_fbf{hh}")
        e(f"{MF} {vr(S[0],16)}, {vr(KF[0],4)}, {vr(q,4)}, 0")
        e(f"s_branch L_fbl{hh}")
        lab(f"L_fbf{hh}")
        e(f"{MF} {vr(S[0],16)}, {vr(KF[0],4)}, {vr(q,4)}, {vr(CF,16)}")
        e(f"s_branch L_fbl{hh}")
        lab(f"L_fbm{hh}")
        e(f"v_mov_b32 v{vT1}, v{vT0}")
        e("s_nop 1")
        e(f"v_permlane32_swap_b32 v{vT0}, v{vT1}")
        e("s_nop 1")
        e(f"v_max_f32 v{vT0}, v{vT0}, v{vT1}")
        for j in range(16):
            e(f"v_sub_f32 v{CD+j}, v{CD+j}, v{vT0}")
            e(f"v_sub_f32 v{CF+j}, v{CF+j}, v{vT0}")
            e(f"v_sub_f32 v{CP+j}, 0, v{vT0}")
        e("s_nop 1")
        e(f"s_branch L_att{hh}")
        lab(f"L_fbdone{hh}")
        e(f"s_branch L_ok{hh}")
    return stubs

def restore_c(tag):
    e(f"s_cmp_eq_u32 s{sFB}, 0")
    e(f"s_cbranch_scc1 {tag}")
    build_masks()
    for j in range(16): e(f"v_mov_b32 v{CP+j}, 0")
    lab(tag)

def outproj(st):
    cm(f"---- out-projection stage {st} ----")
    if st == 1: oloads(1)
    if st == 1 and SENT:
        e("s_nop 7")
        for j in range(32): e(f"v_mov_b32 v{S[0]+j}, v{OUTA[0]+j}")
    def rw(gq):
        f = WOF[gq % 2]
        for ct, a in enumerate((vWOA0, vWOA1)):
            e(f"ds_read_b64_tr_b16 {vr(f+4*ct,2)}, v{a} offset:{gq*8192+st*2048}")
            e(f"ds_read_b64_tr_b16 {vr(f+4*ct+2,2)}, v{a} offset:{gq*8192+st*2048+1024}")
    if st == 0 and SENT:
        e("s_waitcnt vmcnt(1)")
        e("s_barrier")
        ts()
    elif st == 0:
        e("s_waitcnt vmcnt(0)")
        e(f"s_cmp_lg_u32 s{sEOK}, 2")
        e("s_cbranch_scc1 L_e1")
        flag_store(sOWNF, sTOK)
        lab("L_e1")
        e("s_barrier")
        ts()
    rw(0)
    for gq in range(8):
        if gq < 7: rw(gq+1)
        if st == 0: e(f"s_waitcnt lgkmcnt({4 if gq < 7 else 0})")
        else: e(f"s_waitcnt vmcnt({7-gq}) lgkmcnt({4 if gq < 7 else 0})")
        f = WOF[gq % 2]
        for ct in range(2):
            c = "0" if (st == 0 and gq == 0) else vr(OUTA[ct],16)
            e(f"{MF} {vr(OUTA[ct],16)}, {vr(f+4*ct,4)}, {vr(OIN[gq],4)}, {c}")
        if st == 1 and SENT:
            o = OIN[gq]
            e(f"v_max3_u32 v{vT3}, v{o}, v{o+1}, v{vT3}" if gq else f"v_max_u32 v{vT3}, v{o}, v{o+1}")
            e(f"v_max3_u32 v{vT3}, v{o+2}, v{o+3}, v{vT3}")

def phase23():
    e(f"s_mov_b32 s{sDONE}, 0")
    e(f"s_lshl_b32 s{sOWNF}, s{sG}, 3"); e(f"s_add_u32 s{sOWNF}, s{sOWNF}, s{sFO}")
    st0 = attention(0)
    lab("L_wor")
    e(f"s_cmp_ge_u32 s{sWOC}, 8")
    e("s_cbranch_scc1 L_wod")
    dma_wo_rot(1)
    e(f"s_add_u32 s{sWOC}, s{sWOC}, 1")
    e("s_branch L_wor")
    lab("L_wod")
    e(f"s_mov_b32 s{sEOK}, 0")
    ts()
    restore_c("L_rc0")
    e(f"v_add_u32 v{vKA}, 1024, v{vKA}"); e(f"v_add_u32 v{vVA}, 1024, v{vVA}"); e(f"v_add_u32 v{vVA2}, 1024, v{vVA2}")
    st1 = attention(1)
    ts()
    e(f"v_bfe_u32 v{vT0}, v0, 2, 2")
    e(f"v_lshrrev_b32 v{vT1}, 5, v0")
    e(f"v_lshl_add_u32 v{vT0}, v{vT1}, 2, v{vT0}")
    e(f"v_lshlrev_b32 v{vT0}, 7, v{vT0}")
    e(f"s_lshl_b32 s{sT0}, s{sHP}, 12")
    e(f"v_add_u32 v{vT0}, s{sT0}, v{vT0}")
    e(f"v_bfe_u32 v{vT1}, v0, 1, 1"); e(f"v_lshl_add_u32 v{vT0}, v{vT1}, 3, v{vT0}")
    e(f"v_and_b32 v{vT1}, 1, v0"); e(f"v_lshlrev_b32 v{vT1}, 1, v{vT1}")
    e(f"v_bfe_u32 v{vT2}, v0, 4, 1"); e(f"v_add_u32 v{vT1}, v{vT1}, v{vT2}")
    e(f"v_bfe_u32 v{vT2}, v0, 3, 1"); e(f"v_lshlrev_b32 v{vT2}, 2, v{vT2}")
    e(f"v_xor_b32 v{vT1}, v{vT1}, v{vT2}")
    e(f"v_lshl_add_u32 v{vWOA0}, v{vT1}, 4, v{vT0}")
    e(f"v_xor_b32 v{vWOA1}, 64, v{vWOA0}")
    e(f"s_cmp_eq_u32 s{sDONE}, 1")
    e("s_cbranch_scc1 L_f0done")
    e("s_waitcnt vmcnt(1)")
    flag_store(sOWNF, sTOK)
    lab("L_f0done")
    e(f"s_add_u32 s{sOWNF}, s{sOWNF}, 128")
    e(f"s_cmp_eq_u32 s{sEOK}, 2")
    e("s_cbranch_scc1 L_e0")
    poll("L_po0", vFLG, sFO, sTOK, 2)
    if not SENT: flag_store(sOWNF, sTOK)
    oloads(0)
    if SENT:
        e("s_waitcnt vmcnt(0)")
    lab("L_e0")
    ts()
    outproj(0)
    e(f"s_or_b32 s{sT0}, s{sG}, s{sWv}")
    e(f"s_cmp_lg_u32 s{sT0}, 0")
    e("s_cbranch_scc1 L_noep")
    e(f"s_lshl_b32 s{sT0}, s{sB}, 5"); e(f"s_add_u32 s{sT0}, s{sT0}, s{sI}"); e(f"s_lshl_b32 s{sT0}, s{sT0}, 2")
    e(f"s_cmp_eq_u32 s{sI}, 15")
    e(f"s_cselect_b32 s{sT1}, 7, 1")
    e(f"v_mov_b32 v{vT0}, s{sEP}")
    e(f"v_writelane_b32 v{vT0}, s{sEP+1}, 1")
    e(f"v_writelane_b32 v{vT0}, s{sEP+2}, 2")
    e(f"s_mov_b32 s{sT2}, 1664525")
    e(f"v_mul_lo_u32 v{vT0}, v{vT0}, s{sT2}")
    e(f"v_add_u32 v{vT0}, 1013904223, v{vT0}")
    e(f"v_lshlrev_b32 v{vT1}, 2, v0")
    e(f"s_mov_b32 exec_lo, s{sT1}"); e("s_mov_b32 exec_hi, 0")
    e(f"buffer_store_dword v{vT0}, v{vT1}, {sr(SWS,4)}, s{sT0} offen")
    e("s_mov_b64 exec, -1")
    lab("L_noep")
    if SENT:
        e(f"s_mov_b32 s{sCNT}, 0")
        e("s_waitcnt vmcnt(0)")
        ts()
        lab("L_s1")
        outproj(1)
        e(f"v_cmp_eq_u32 vcc, -1, v{vT3}")
        e("s_cbranch_vccz L_s1ok")
        e("s_nop 7"); e("s_nop 7")
        for j in range(32): e(f"v_mov_b32 v{OUTA[0]+j}, v{S[0]+j}")
        e(f"v_lshlrev_b32 v{vT0}, 9, v{vFLG}")
        e(f"s_add_u32 s{sT0}, s{sOLD}, {1024 + 1020}")
        lab("L_s1p")
        e(f"buffer_load_dword v{vT1}, v{vT0}, {sr(SWS,4)}, s{sT0} offen sc1")
        e(f"s_add_u32 s{sCNT}, s{sCNT}, 1")
        e(f"s_cmp_ge_u32 s{sCNT}, 0x400000")
        e("s_cbranch_scc1 L_s1ok")
        e("s_waitcnt vmcnt(0)")
        e(f"v_cmp_eq_u32 vcc, -1, v{vT1}")
        e("s_cbranch_vccnz L_s1p")
        e("s_branch L_s1")
        lab("L_s1ok")
    else:
        e(f"s_add_u32 s{sFO}, s{sFO}, 128")
        poll("L_po1", vFLG, sFO, sTOK, 2)
        ts()
        outproj(1)
    cm("---- pairwise reduction over the two head-pair waves, pack, store ----")
    e(f"s_lshl_b32 s{sT0}, s{sWv}, 12"); e(f"s_add_u32 s{sT0}, s{sT0}, 65536")
    e(f"v_add_u32 v{vT0}, s{sT0}, v{vL16}")
    e(f"s_sub_u32 s{sT1}, 7, s{sWv}")
    e(f"s_lshl_b32 s{sT1}, s{sT1}, 12"); e(f"s_add_u32 s{sT1}, s{sT1}, 65536")
    e(f"v_add_u32 v{vT1}, s{sT1}, v{vL16}")
    e(f"s_lshl_b32 s{sT0}, s{sI}, 2"); e(f"s_add_u32 s{sT0}, s{sT0}, s{sTB}"); e(f"s_lshl_b32 s{sT0}, s{sT0}, 16")
    e(f"s_lshl_b32 s{sT1}, s{sB}, 10"); e(f"s_add_u32 s{sT0}, s{sT0}, s{sT1}")
    e(f"s_lshl_b32 s{sT1}, s{sG}, 7"); e(f"s_add_u32 s{sT0}, s{sT0}, s{sT1}")
    e(f"s_lshl_b32 s{sT1}, s{sHP}, 6"); e(f"s_add_u32 s{sT0}, s{sT0}, s{sT1}")
    e(f"v_and_b32 v{vT2}, 31, v0"); e(f"v_lshlrev_b32 v{vT2}, 11, v{vT2}")
    e(f"v_lshrrev_b32 v{vT3}, 5, v0"); e(f"v_lshl_add_u32 v{vT2}, v{vT3}, 5, v{vT2}")
    e(f"s_cmp_eq_u32 s{sHP}, 0")
    e("s_cbranch_scc1 L_red0")
    for keep in (1, 0):
        if keep == 0: lab("L_red0")
        give = OUTA[1-keep]; mine = OUTA[keep]
        e("s_nop 3")
        for j in range(4): e(f"ds_write_b128 v{vT0}, {vr(give+4*j,4)} offset:{j*1024}")
        e("s_waitcnt lgkmcnt(0)")
        e("s_barrier")
        for j in range(4): e(f"ds_read_b128 {vr(S[0]+4*j,4)}, v{vT1} offset:{j*1024}")
        for j in range(4):
            e(f"s_waitcnt lgkmcnt({3-j})")
            for r in range(4): e(f"v_add_f32 v{mine+4*j+r}, v{mine+4*j+r}, v{S[0]+4*j+r}")
        for j in range(8): e(f"v_cvt_pk_bf16_f32 v{mine+j}, v{mine+2*j}, v{mine+2*j+1}")
        e(f"buffer_store_dwordx4 {vr(mine,4)}, v{vT2}, {sr(SOUT,4)}, s{sT0} offen{OUTP}")
        e(f"buffer_store_dwordx4 {vr(mine+4,4)}, v{vT2}, {sr(SOUT,4)}, s{sT0} offen offset:16{OUTP}")
        if keep == 1: e("s_branch L_stored")
    lab("L_stored")
    if DIAG:
        e("s_waitcnt vmcnt(0)")
        ts()
        e(f"s_memrealtime {sr(sT2,2)}"); e("s_waitcnt lgkmcnt(0)"); e(f"s_mov_b32 s{sTS+21}, s{sT2}")
        for n in list(range(tsn[0])) + [20, 21]:
            e(f"v_writelane_b32 v{vT0}, s{sTS+n}, {n}")
        if "--dbg" in sys.argv:
            e("s_mov_b64 s[4:5], s[50:51]"); e("s_mov_b32 s6, 256"); e("s_mov_b32 s7, 0x20000")
            e(f"s_not_b32 s{sT1}, s{sTS+20}")
            e(f"v_mov_b32 v{vT2}, s{sTS+21}"); e(f"v_writelane_b32 v{vT2}, s{sT1}, 1")
            sel = [2, 3, 7, 8, 9, 10, 11, 12, 13, 14, 15, 16, 17]
            for j, n in enumerate(sel):
                e(f"s_sub_u32 s{sT1}, s{sTS+n}, s{sTS}")
                e(f"v_writelane_b32 v{vT2}, s{sT1}, {2+j}")
            e(f"s_lshl_b32 s{sT1}, s2, 3"); e(f"s_add_u32 s{sT1}, s{sT1}, s{sWv}")
            e(f"s_cmp_eq_u32 s{sT1}, {opt('dbgw', '805')}")
            e(f"s_cselect_b32 s{sT1}, 0x7fff, 3")
            e(f"v_lshlrev_b32 v{vT1}, 2, v0")
            e(f"s_mov_b32 exec_lo, s{sT1}"); e("s_mov_b32 exec_hi, 0")
            e(f"buffer_atomic_umax v{vT2}, v{vT1}, s[4:7], 0 offen")
            e("s_mov_b64 exec, -1")
        e(f"s_lshl_b32 s{sT0}, s2, 3"); e(f"s_add_u32 s{sT0}, s{sT0}, s{sWv}"); e(f"s_lshl_b32 s{sT0}, s{sT0}, 7")
        e(f"s_add_u32 s{sT0}, s{sT0}, {WS_DIAG}")
        e(f"v_lshlrev_b32 v{vT1}, 2, v0")
        e("s_mov_b32 exec_lo, -1"); e("s_mov_b32 exec_hi, 0")
        e(f"buffer_store_dword v{vT0}, v{vT1}, {sr(SWS,4)}, s{sT0} offen")
    lab("L_end")
    e("s_endpgm")
    st0(); st1()
    lab("L_last")
    e("s_endpgm")

hdr = open("cdna_kernels/%s.s.ref" % NAME).read().split("\n")
out = [l for l in hdr if l.startswith(";") and "@launch" not in l and "Override" not in l and "grid=ceil" not in l]
out.append("; @launch grid=(256,1,1) block=(512,1,1) lds=163840")
out += ['.amdgcn_target "amdgcn-amd-amdhsa--gfx950"', ".text", f".globl {NAME}_kernel", ".p2align 8",
        f".type {NAME}_kernel,@function", f"{NAME}_kernel:"]
prologue(); phase1(); (handoff_kv_lf if LF else handoff_kv)(); phase23()
out += L
out += ['.section .rodata,"a"', ".p2align 6", f".amdhsa_kernel {NAME}_kernel",
        "  .amdhsa_next_free_vgpr 256", "  .amdhsa_next_free_sgpr 102", "  .amdhsa_accum_offset 256",
        "  .amdhsa_group_segment_fixed_size 0", "  .amdhsa_kernarg_size 72", "  .amdhsa_user_sgpr_count 2",
        "  .amdhsa_user_sgpr_kernarg_segment_ptr 1", "  .amdhsa_system_sgpr_workgroup_id_x 1", ".end_amdhsa_kernel"]
print("\n".join(out))
```
